```python
import torch

def _softmax(x, axis=-1):
    return torch.softmax(x, dim=axis)

def _gelu(x):
    return torch.nn.functional.gelu(x, approximate='tanh')

def _silu(x):
    return torch.nn.functional.silu(x)

def _sigmoid(x):
    return torch.sigmoid(x)

def _layernorm(x, axis=-1, eps=1e-05):
    m = x.mean(dim=axis, keepdim=True)
    v = x.var(dim=axis, keepdim=True, unbiased=False)
    return (x - m) / torch.sqrt(v + eps)

def _scatter_add(tgt, idx, src, axis=0):
    return tgt.clone().index_add_(axis, idx, src)

def _segment_sum(src, seg, n):
    out = torch.zeros((n,) + src.shape[1:], dtype=src.dtype)
    return out.index_add_(0, seg, src)

def _pad(x, pw):
    flat = tuple((v for pair in reversed(pw) for v in pair))
    return torch.nn.functional.pad(x, flat)
kernel_name = 'adaLN_cond__memory_aug_recurrent_mem_tr__geglu_ffn__prompt'

def setup_inputs():

    _w = lambda a: (lambda t: t.to(torch.bfloat16) if t.is_floating_point() else t)(torch.as_tensor(a))

    def _A_setup():
        B, S, Dm = (1, 2048, 576)
        H, Dh = (32, 128)
        M, seg = (8, 32)
        seg = min(seg, S)
        S = S // seg * seg
        return {'x': _w((lambda *s: torch.randn(*s, dtype=torch.bfloat16) * 0.05)(B, S, Dm)), 'mem0': _w((lambda *s: torch.randn(*s, dtype=torch.bfloat16) * 0.4)(B, M, Dm)), 'Wq': _w((lambda *s: torch.randn(*s, dtype=torch.bfloat16) * 3.2)(Dm, H, Dh) * Dm ** (-0.5)), 'Wk': _w((lambda *s: torch.randn(*s, dtype=torch.bfloat16) * 3.2)(Dm, H, Dh) * Dm ** (-0.5)), 'Wv': _w((lambda *s: torch.randn(*s, dtype=torch.bfloat16) * 0.4)(Dm, H, Dh) * Dm ** (-0.5)), 'Wo': _w((lambda *s: torch.randn(*s, dtype=torch.bfloat16) * 0.4)(H, Dh, Dm) * (H * Dh) ** (-0.5)), 'seg_len': seg}
    _A_in = _A_setup()

    def _B_setup():
        B, S, D, F = (1, 2048, 576, 4608)
        return {'x': _w((lambda *s: torch.randn(*s, dtype=torch.bfloat16) * 0.05)(B, S, D)), 'w_gate': _w((lambda *s: torch.randn(*s, dtype=torch.bfloat16) * 0.05)(D, F)), 'w_up': _w((lambda *s: torch.randn(*s, dtype=torch.bfloat16) * 0.05)(D, F)), 'w_down': _w((lambda *s: torch.randn(*s, dtype=torch.bfloat16) * 0.05)(F, D))}
    _B_in = _B_setup()
    return {'A_x': _A_in['x'], 'A_mem0': _A_in['mem0'], 'A_Wq': _A_in['Wq'], 'A_Wk': _A_in['Wk'], 'A_Wv': _A_in['Wv'], 'A_Wo': _A_in['Wo'], 'A_seg_len': _A_in['seg_len'], 'B_x': _B_in['x'], 'B_w_gate': _B_in['w_gate'], 'B_w_up': _B_in['w_up'], 'B_w_down': _B_in['w_down'], 'c': _w((lambda *s: torch.randn(*s, dtype=torch.bfloat16) * 0.1)(1, 576) * 8.0), 'w_mod': _w((lambda *s: torch.randn(*s, dtype=torch.bfloat16) * 0.1)(576, 6 * 576) * 576 ** (-0.5) * 8.0)}

def reference(A_x, A_mem0, A_Wq, A_Wk, A_Wv, A_Wo, A_seg_len, B_x, B_w_gate, B_w_up, B_w_down, c, w_mod):

    def _A_ref(x, mem0, Wq, Wk, Wv, Wo, seg_len):
        B, S, Dm = x.shape
        H, Dh = (Wq.shape[1], Wq.shape[2])
        M = mem0.shape[1]
        scale = Dh ** (-0.5)
        n_seg = S // seg_len
        L = M + seg_len
        idx = torch.arange(L)
        mask = (idx[:, None] < M) | (idx[:, None] >= idx[None, :])
        mem = mem0
        outs = []
        for s in range(n_seg):
            xs = x[:, s * seg_len:(s + 1) * seg_len, :].clone()
            h = torch.concatenate([mem, xs], axis=1)
            q = torch.einsum('btd,dhe->bhte', h, Wq)
            k = torch.einsum('btd,dhe->bhte', h, Wk)
            v = torch.einsum('btd,dhe->bhte', h, Wv)
            scores = torch.einsum('bhqe,bhke->bhqk', q, k) * scale
            scores = torch.where(mask[None, None], scores, -1000000000.0)
            p = _softmax(scores, axis=-1)
            o = torch.einsum('bhqk,bhke->bhqe', p, v)
            o = torch.einsum('bhte,hed->btd', o, Wo)
            mem = o[:, :M, :].clone()
            outs.append(o[:, M:, :])
        return torch.concatenate(outs, axis=1)

    def _B_ref(x, w_gate, w_up, w_down):
        return _gelu(x @ w_gate) * (x @ w_up) @ w_down
    x = A_x
    mod = (_silu(c) @ w_mod).reshape(c.shape[0], 6, 1, -1)
    sa, ca, ga, sb, cb, gb = (mod[:, 0].clone(), mod[:, 1].clone(), mod[:, 2].clone(), mod[:, 3].clone(), mod[:, 4].clone(), mod[:, 5].clone())
    h = _layernorm(x, axis=-1) * (1 + ca) + sa
    x = x + ga * _A_ref(h, A_mem0, A_Wq, A_Wk, A_Wv, A_Wo, A_seg_len)
    h = _layernorm(x, axis=-1) * (1 + cb) + sb
    x = x + gb * _B_ref(h, B_w_gate, B_w_up, B_w_down)
    return x
```

```python
class K:
    def __init__(self, name):
        self.name = name
        self.lines = []
        self.nlabel = 0
        self.vgpr = 256
        self.sgpr = 102
        self.accum = 256
        self.wg_y = False
    def __call__(self, s=""):
        import re
        for ln in s.split("\n"):
            mm = re.search(r"offset:(\d+)", ln)
            if mm and ln.strip().startswith("buffer_"):
                assert int(mm.group(1)) < 4096, ln
            if mm and ln.strip().startswith("ds_") and "swizzle" not in ln:
                assert int(mm.group(1)) < 65536, ln
            self.lines.append(" " + ln.strip() if ln.strip() and not ln.strip().endswith(":") else ln.strip())
    def label(self, base="L"):
        self.nlabel += 1
        return f"{self.name}_{base}{self.nlabel}"
    def c(self, s):
        self.lines.append("    ; " + s)
    def srd(self, d, base_lo, base_hi, nbytes):
        self(f"s_mov_b32 s{d}, s{base_lo}")
        self(f"s_and_b32 s{d+1}, s{base_hi}, 0xffff")
        self(f"s_mov_b32 s{d+2}, {nbytes}")
        self(f"s_mov_b32 s{d+3}, 0x00020000")
    def srd_off(self, d, base_lo, base_hi, off, nbytes):
        self(f"s_add_u32 s{d}, s{base_lo}, {off & 0xffffffff}")
        self(f"s_addc_u32 s{d+1}, s{base_hi}, {off >> 32}")
        self(f"s_and_b32 s{d+1}, s{d+1}, 0xffff")
        self(f"s_mov_b32 s{d+2}, {nbytes}")
        self(f"s_mov_b32 s{d+3}, 0x00020000")
    def text(self):
        out = []
        out.append(f".globl {self.name}")
        out.append(".p2align 8")
        out.append(f".type {self.name},@function")
        out.append(f"{self.name}:")
        out += self.lines
        out.append("    s_endpgm")
        return "\n".join(out)
    def desc(self):
        out = []
        out.append(f".amdhsa_kernel {self.name}")
        out.append(f"  .amdhsa_next_free_vgpr {self.vgpr}")
        out.append(f"  .amdhsa_next_free_sgpr {self.sgpr}")
        out.append(f"  .amdhsa_accum_offset {self.accum}")
        out.append("  .amdhsa_group_segment_fixed_size 0")
        out.append("  .amdhsa_kernarg_size 128")
        out.append("  .amdhsa_user_sgpr_count 2")
        out.append("  .amdhsa_user_sgpr_kernarg_segment_ptr 1")
        out.append("  .amdhsa_system_sgpr_workgroup_id_x 1")
        if self.wg_y:
            out.append("  .amdhsa_system_sgpr_workgroup_id_y 1")
        out.append("  .amdhsa_float_denorm_mode_32 3")
        out.append("  .amdhsa_float_denorm_mode_16_64 3")
        out.append(".end_amdhsa_kernel")
        return "\n".join(out)

def build_file(header, launches, kernels):
    out = [header.rstrip("\n")]
    for (k, g, b, lds) in launches:
        out.append(f"; @launch kernel={k} grid=({g[0]},{g[1]},{g[2]}) block=({b[0]},{b[1]},{b[2]}) lds={lds}")
    out.append('.amdgcn_target "amdgcn-amd-amdhsa--gfx950"')
    out.append(".text")
    for k in kernels:
        out.append(k.text())
    out.append('.section .rodata,"a"')
    for k in kernels:
        out.append(".p2align 6")
        out.append(k.desc())
    return "\n".join(out) + "\n"
```

```python
from asmlib import K
from layout import *

def k_attn():
    k = K("attn_kernel")
    k.vgpr = 168; k.accum = 168; k.sgpr = 64
    k.lds = 4 * 10240
    Lend = k.label("end")
    k("s_cmp_ge_u32 s2, 512")
    k(f"s_cbranch_scc1 {Lend}")
    k(f"s_load_dwordx2 s[12:13], s[0:1], {KA['ws']}")
    k("v_and_b32 v1, 63, v0")
    k("v_lshrrev_b32 v2, 6, v0")
    k("s_nop 0")
    k("v_readfirstlane_b32 s14, v2")
    k("v_lshrrev_b32 v3, 4, v1")
    k("v_and_b32 v4, 15, v1")
    k("s_lshr_b32 s15, s2, 3")
    k("s_and_b32 s16, s2, 7")
    k("s_lshl_b32 s16, s16, 2")
    k("s_add_u32 s16, s16, s14")
    k("s_lshl_b32 s17, s16, 8")
    k("s_waitcnt lgkmcnt(0)")
    k.srd_off(24, 12, 13, OFF_QKV, S*12288*2)
    k.srd_off(28, 12, 13, OFF_KVM, 64*8*16384)
    k.srd_off(32, 12, 13, OFF_OT, S*4096*2)
    k(f"s_mul_i32 s18, s15, {32*24576}")
    k("s_add_u32 s18, s18, s17")
    k("s_lshl_b32 s19, s15, 17")
    k("s_add_u32 s19, s19, s17")
    k("s_mul_i32 s20, s14, 10240")
    k("s_movk_i32 s21, 24576")
    k("v_mul_lo_u32 v5, v4, s21")
    k("v_lshl_add_u32 v5, v3, 4, v5")
    k("v_and_b32 v6, 7, v1")
    k("v_lshlrev_b32 v6, 14, v6")
    k("v_lshl_add_u32 v6, v3, 4, v6")
    for par in range(2):
        k("v_lshrrev_b32 v7, 1, v4")
        k(f"v_or_b32 v8, {4*par}, v3")
        k("v_xor_b32 v7, v7, v8")
        k("v_lshlrev_b32 v7, 1, v7")
        k("v_and_b32 v8, 1, v1")
        k("v_or_b32 v7, v7, v8")
        k("v_mul_lo_u32 v8, v3, s21")
        k(f"v_lshl_add_u32 v{9+par}, v7, 4, v8")
        k("v_lshlrev_b32 v8, 14, v3")
        k(f"v_lshl_add_u32 v{11+par}, v7, 4, v8")
    for i in range(8):
        k(f"s_add_u32 s22, s18, {16384 + i*4*24576}")
        k(f"s_add_u32 m0, s20, {i*1024}")
        k("s_nop 0")
        k(f"buffer_load_dwordx4 v{9+(i&1)}, s[24:27], s22 offen lds")
    for i in range(2):
        k(f"s_add_u32 s22, s19, {8192 + i*4*16384}")
        k(f"s_add_u32 m0, s20, {(8+i)*1024}")
        k("s_nop 0")
        k(f"buffer_load_dwordx4 v{11+i}, s[28:31], s22 offen lds")
    for qt in range(2):
        k(f"s_add_u32 s22, s18, {qt*16*24576}")
        for ks in range(4):
            r = 16 + (qt*4+ks)*4
            k(f"buffer_load_dwordx4 v[{r}:{r+3}], v5, s[24:27], s22 offen offset:{ks*64}")
    for ks in range(4):
        k(f"buffer_load_dwordx4 v[{48+4*ks}:{51+4*ks}], v6, s[28:31], s19 offen offset:{ks*64}")
    for t in range(2):
        k(f"s_add_u32 s22, s18, {8192 + t*16*24576}")
        for ks in range(4):
            r = 64 + (t*4+ks)*4
            k(f"buffer_load_dwordx4 v[{r}:{r+3}], v5, s[24:27], s22 offen offset:{ks*64}")
    for i in range(24): k(f"v_mov_b32 v{96+i}, 0")
    for r in range(4):
        k(f"v_lshl_add_u32 v7, v3, 2, {r}")
        k(f"v_cmp_gt_u32 s[{40+2*r}:{41+2*r}], v7, v4")
    k("v_cmp_lt_u32 s[48:49], 31, v1")
    k("v_lshrrev_b32 v7, 2, v4")
    k("v_lshl_add_u32 v7, v3, 2, v7")
    k("v_and_b32 v8, 7, v7")
    k("v_lshlrev_b32 v13, 8, v7")
    k("v_lshl_add_u32 v13, v8, 5, v13")
    k("v_and_b32 v14, 3, v1")
    k("v_lshl_add_u32 v13, v14, 3, v13")
    k("v_add_u32 v13, s20, v13")
    k("v_lshlrev_b32 v15, 8, v8")
    k("v_lshl_add_u32 v15, v8, 5, v15")
    k("v_lshl_add_u32 v15, v14, 3, v15")
    k("s_add_u32 s22, s20, 8192")
    k("v_add_u32 v15, s22, v15")
    k("s_mov_b32 s44+8, 0" if False else "s_mov_b32 s52, 0x3db504f3")
    k("s_mov_b32 s53, 0x3fb8aa3b")
    k("s_waitcnt vmcnt(0)")
    for qt in range(2):
        for t in range(3):
            if qt == 0 and t == 2: continue
            a = 96 + (qt*3+t)*4
            for ks in range(4):
                kr = 48 + (t*4+ks)*4; qr = 16 + (qt*4+ks)*4
                k(f"v_mfma_f32_16x16x32_bf16 v[{a}:{a+3}], v[{kr}:{kr+3}], v[{qr}:{qr+3}], v[{a}:{a+3}]")
    for et in range(8):
        k(f"v_xor_b32 v120, {et*32}, v13")
        k(f"v_xor_b32 v121, {et*32}, v15")
        k(f"ds_read_b64_tr_b16 v[{16+8*et}:{17+8*et}], v120")
        k(f"ds_read_b64_tr_b16 v[{18+8*et}:{19+8*et}], v120 offset:4096")
        k(f"ds_read_b64_tr_b16 v[{20+8*et}:{21+8*et}], v121")
    k("v_mov_b32 v124, 0xff800000")
    def xred(op, r, t):
        k(f"v_mov_b32 v{t}, v{r}")
        k("s_nop 1")
        k(f"v_permlane32_swap_b32 v{r}, v{t}")
        k(f"{op} v{r}, v{r}, v{t}")
        k(f"v_mov_b32 v{t}, v{r}")
        k("s_nop 1")
        k(f"v_permlane16_swap_b32 v{r}, v{t}")
        k(f"{op} v{r}, v{r}, v{t}")
    P = {0: 128, 1: 136}
    for qt in range(2):
        b = 96 + qt*12
        T = 144
        for i in range(0, 12, 2): k(f"v_cvt_pk_bf16_f32 v{T+(i>>1)}, v{b+i}, v{b+i+1}")
        for i in range(0, 12, 2):
            k(f"v_lshlrev_b32 v{b+i}, 16, v{T+(i>>1)}"); k(f"v_and_b32 v{b+i+1}, 0xffff0000, v{T+(i>>1)}")
        for i in range(12): k(f"v_mul_f32 v{b+i}, s52, v{b+i}")
        for i in range(0, 12, 2): k(f"v_cvt_pk_bf16_f32 v{T+(i>>1)}, v{b+i}, v{b+i+1}")
        for i in range(0, 12, 2):
            k(f"v_lshlrev_b32 v{b+i}, 16, v{T+(i>>1)}"); k(f"v_and_b32 v{b+i+1}, 0xffff0000, v{T+(i>>1)}")
        for r in range(4):
            k(f"v_cndmask_b32 v{b+r}, v{b+r}, v124, s[48:49]")
        tri = 1 + qt
        for r in range(4):
            k(f"v_cndmask_b32 v{b+4*tri+r}, v{b+4*tri+r}, v124, s[{40+2*r}:{41+2*r}]")
        if qt == 0:
            for r in range(4): k(f"v_mov_b32 v{b+8+r}, v124")
        k(f"v_max3_f32 v{T}, v{b}, v{b+1}, v{b+2}")
        k(f"v_max3_f32 v{T+1}, v{b+3}, v{b+4}, v{b+5}")
        k(f"v_max3_f32 v{T+2}, v{b+6}, v{b+7}, v{b+8}")
        k(f"v_max3_f32 v{T+3}, v{b+9}, v{b+10}, v{b+11}")
        k(f"v_max3_f32 v{T}, v{T}, v{T+1}, v{T+2}")
        k(f"v_max_f32 v{T}, v{T}, v{T+3}")
        xred("v_max_f32", T, T+1)
        k(f"v_mul_f32 v{T}, s53, v{T}")
        for i in range(12): k(f"v_fma_f32 v{b+i}, v{b+i}, s53, -v{T}")
        for i in range(12): k(f"v_exp_f32 v{b+i}, v{b+i}")
        k("s_nop 0")
        for i in range(6): k(f"v_add_f32 v{T+i}, v{b+2*i}, v{b+2*i+1}")
        k(f"v_add_f32 v{T}, v{T}, v{T+1}"); k(f"v_add_f32 v{T+2}, v{T+2}, v{T+3}"); k(f"v_add_f32 v{T+4}, v{T+4}, v{T+5}")
        k(f"v_add_f32 v{T}, v{T}, v{T+2}"); k(f"v_add_f32 v{T}, v{T}, v{T+4}")
        xred("v_add_f32", T, T+1)
        k(f"v_rcp_f32 v{T+1}, v{T}")
        k("s_nop 0")
        for i in range(12): k(f"v_mul_f32 v{b+i}, v{b+i}, v{T+1}")
        p = P[qt]
        k(f"v_cvt_pk_bf16_f32 v{p+4}, v{b}, v{b+1}"); k(f"v_cvt_pk_bf16_f32 v{p+5}, v{b+2}, v{b+3}")
        k(f"v_cvt_pk_bf16_f32 v{p}, v{b+4}, v{b+5}"); k(f"v_cvt_pk_bf16_f32 v{p+1}, v{b+6}, v{b+7}")
        k(f"v_cvt_pk_bf16_f32 v{p+2}, v{b+8}, v{b+9}"); k(f"v_cvt_pk_bf16_f32 v{p+3}, v{b+10}, v{b+11}")
    k("v_lshlrev_b32 v5, 13, v4")
    k("v_lshl_add_u32 v5, v3, 3, v5")
    k("s_lshl_b32 s22, s15, 18")
    k("s_add_u32 s22, s22, s17")
    k("s_waitcnt lgkmcnt(0)")
    for qt in range(2):
        p = P[qt]
        A = 80
        for i in range(32): k(f"v_mov_b32 v{A+i}, 0")
        k("s_nop 1")
        for et in range(8):
            a = A + 4*et
            k(f"v_mfma_f32_16x16x32_bf16 v[{a}:{a+3}], v[{16+8*et}:{19+8*et}], v[{p}:{p+3}], v[{a}:{a+3}]")
        for et in range(8):
            a = A + 4*et
            k(f"v_mfma_f32_16x16x16_bf16 v[{a}:{a+3}], v[{20+8*et}:{21+8*et}], v[{p+4}:{p+5}], v[{a}:{a+3}]")
        k("s_nop 7")
        k(f"s_add_u32 s23, s22, {qt*16*8192}")
        for et in range(8):
            a = A + 4*et
            k(f"v_cvt_pk_bf16_f32 v{150+2*et}, v{a}, v{a+1}")
            k(f"v_cvt_pk_bf16_f32 v{151+2*et}, v{a+2}, v{a+3}")
            k(f"buffer_store_dwordx2 v[{150+2*et}:{151+2*et}], v5, s[32:35], s23 offen offset:{et*32}")
    k(f"{Lend}:")
    return k
```

```python
from asmlib import K
from layout import *


def gemm_kernel(name, kind):
    k = K(name)
    mode = 'a' if kind in ('qkv', 'up') else 'b'
    if kind == 'qkv':
        NB, NKS, NST, lda, ldw = 48, 1, 9, 1152, 8192
    elif kind == 'up':
        NB, NKS, NST, lda, ldw = 36, 1, 9, 1152, 9216
    elif kind == 'wo':
        NB, NKS, NST, lda, ldw = 4, 4, 16, 8192, 1152
    elif kind == 'down':
        NB, NKS, NST, lda, ldw = 4, 4, 18, 9216, 1152
    NWG = 16 * NB * NKS
    TM, TN = (4, 8) if mode == 'a' else (2, 9)
    WBYTES = 32768 if mode == 'a' else 18432
    STG = 16384 + WBYTES
    k.lds = 3 * STG
    k.nwg = NWG
    k.vgpr = 256 + 128; k.accum = 256; k.sgpr = 64
    Lend = k.label("end")
    k(f"s_cmp_ge_u32 s2, {NWG}")
    k(f"s_cbranch_scc1 {Lend}")
    k(f"s_load_dwordx2 s[8:9], s[0:1], {KA['ws']}")
    if kind == 'qkv':
        k(f"s_load_dwordx4 s[4:7], s[0:1], {KA['Wq']}")
        k(f"s_load_dwordx2 s[10:11], s[0:1], {KA['Wv']}")
    elif kind == 'up':
        k(f"s_load_dwordx4 s[4:7], s[0:1], {KA['wg']}")
    elif kind == 'wo':
        k(f"s_load_dwordx2 s[4:5], s[0:1], {KA['Wo']}")
    elif kind == 'down':
        k(f"s_load_dwordx2 s[4:5], s[0:1], {KA['wd']}")
    magic = (1 << 32) // NB + 1
    k(f"s_mov_b32 s43, {magic}")
    k("s_mul_hi_u32 s45, s2, s43")
    k(f"s_mul_i32 s44, s45, {NB}")
    k("s_sub_u32 s44, s2, s44")
    if NKS > 1:
        k(f"s_and_b32 s46, s45, {NKS-1}")
        k(f"s_lshr_b32 s45, s45, {NKS.bit_length()-1}")
    else:
        k("s_mov_b32 s46, 0")
    k("s_waitcnt lgkmcnt(0)")
    if kind == 'qkv':
        k.srd_off(12, 8, 9, OFF_H1, S*D*2)
        k("s_lshr_b32 s47, s44, 4")
        k("s_cmp_eq_u32 s47, 1")
        k("s_cselect_b32 s4, s6, s4"); k("s_cselect_b32 s5, s7, s5")
        k("s_cmp_eq_u32 s47, 2")
        k("s_cselect_b32 s4, s10, s4"); k("s_cselect_b32 s5, s11, s5")
        k.srd(16, 4, 5, 576*4096*2)
        k.srd(20, 4, 5, 576*4096*2)
        k.srd_off(24, 8, 9, OFF_QKV, S*12288*2)
        k("s_and_b32 s48, s44, 15"); k("s_lshl_b32 s48, s48, 9")
        k("s_add_u32 s49, s48, 256")
        k("s_lshl_b32 s50, s44, 9")
    elif kind == 'up':
        k.srd_off(12, 8, 9, OFF_H2, S*D*2)
        k.srd(16, 4, 5, 576*F*2)
        k.srd(20, 6, 7, 576*F*2)
        k.srd_off(24, 8, 9, OFF_ACT, S*F*2)
        k("s_lshl_b32 s48, s44, 8"); k("s_mov_b32 s49, s48"); k("s_mov_b32 s50, s48")
    else:
        k.srd_off(12, 8, 9, OFF_OT if kind == 'wo' else OFF_ACT, S*(4096 if kind == 'wo' else F)*2)
        k.srd(16, 4, 5, (4096 if kind == 'wo' else F)*576*2)
        k.srd_off(24, 8, 9, OFF_P1, 4*S*D*4)
        k("s_mul_i32 s48, s44, 288")
        k("s_mul_i32 s50, s44, 576")
    k(f"s_mul_i32 s51, s46, {NST*64*2}")
    k(f"s_mul_i32 s52, s46, {NST*64*ldw}")
    k(f"s_mul_i32 s53, s45, {128*lda}")
    k("s_add_u32 s53, s53, s51")
    k("s_add_u32 s48, s48, s52")
    if mode == 'a':
        k("s_add_u32 s49, s49, s52")
    k("v_and_b32 v1, 63, v0")
    k("v_lshrrev_b32 v2, 6, v0")
    k("s_nop 0")
    k("v_readfirstlane_b32 s54, v2")
    k("v_lshrrev_b32 v3, 4, v1")
    k("v_and_b32 v4, 15, v1")
    k("v_lshrrev_b32 v5, 3, v1")
    k(f"s_movk_i32 s55, {lda}") if lda < 32768 else k(f"s_mov_b32 s55, {lda}")
    k("v_mul_lo_u32 v5, v5, s55")
    k("v_and_b32 v6, 7, v1")
    for par in range(2):
        k(f"v_add_u32 v7, {4*par}, v3")
        k("v_and_b32 v7, 7, v7")
        k("v_xor_b32 v7, v7, v6")
        k(f"v_lshl_add_u32 v{8+par}, v7, 4, v5")
    k(f"s_mul_i32 s56, s54, {32*lda}")
    k("s_add_u32 s53, s53, s56")
    k(f"s_mov_b32 s57, {ldw}")
    if mode == 'a':
        k("v_mul_lo_u32 v5, v3, s57")
        k("v_lshrrev_b32 v6, 1, v4")
        for var in range(2):
            k(f"v_or_b32 v7, {var<<2}, v3")
            k("v_xor_b32 v7, v7, v6")
            k("v_lshlrev_b32 v7, 1, v7")
            k("v_and_b32 v12, 1, v1")
            k("v_or_b32 v7, v7, v12")
            k(f"v_lshl_add_u32 v{10+var}, v7, 4, v5")
        k("s_lshr_b32 s58, s54, 1")
        k("s_and_b32 s59, s54, 1")
        k("s_cmp_eq_u32 s58, 1")
        k("s_cselect_b32 s28, s20, s16"); k("s_cselect_b32 s29, s21, s17")
        k("s_mov_b32 s30, s18"); k("s_mov_b32 s31, s19")
        k("s_cselect_b32 s60, s49, s48")
        k(f"s_mul_i32 s61, s59, {32*ldw}")
        k("s_add_u32 s60, s60, s61")
        k("s_lshl_b32 s61, s58, 14"); k("s_lshl_b32 s62, s59, 13")
        k("s_add_u32 s61, s61, s62"); k("s_add_u32 s61, s61, 16384")
        NWD = 8
    else:
        k("s_mov_b32 s62, 0xe38f")
        for j in range(5):
            if j < 4:
                k(f"s_add_u32 s58, s54, {4*j}")
            else:
                k("s_and_b32 s58, s54, 1"); k("s_add_u32 s58, s58, 16")
            k("s_lshl_b32 s58, s58, 6")
            k("v_add_u32 v5, s58, v1")
            k("v_mul_lo_u32 v6, v5, s62")
            k("v_lshrrev_b32 v6, 20, v6")
            k("v_mul_u32_u24 v7, 18, v6")
            k("v_sub_u32 v7, v5, v7")
            k("v_mul_lo_u32 v6, v6, s57")
            k(f"v_lshl_add_u32 v{10+j}, v7, 4, v6")
        k("s_mov_b32 s28, s16"); k("s_mov_b32 s29, s17"); k("s_mov_b32 s30, s18"); k("s_mov_b32 s31, s19")
        k("s_mov_b32 s60, s48")
        NWD = 5
    k("s_lshl_b32 s62, s54, 12")
    NDMA = 4 + NWD
    def dma_stage(st):
        buf = (st % 3) * STG
        out = []
        for i in range(4):
            out.append(f"s_add_u32 s63, s53, {st*128 + i*8*lda}\ns_add_u32 m0, s62, {buf + i*1024}\ns_nop 0\nbuffer_load_dwordx4 v{8+(i&1)}, s[12:15], s63 offen lds")
        if mode == 'a':
            for i in range(8):
                out.append(f"s_add_u32 s63, s60, {(st*64 + i*4)*ldw}\ns_add_u32 m0, s61, {buf + i*1024}\ns_nop 0\nbuffer_load_dwordx4 v{10+((i>>1)&1)}, s[28:31], s63 offen lds")
        else:
            for j in range(5):
                if j < 4:
                    out.append(f"s_add_u32 s63, s60, {st*64*ldw}\ns_lshl_b32 m0, s54, 10\ns_add_u32 m0, m0, {buf + 16384 + j*4096}\ns_nop 0\nbuffer_load_dwordx4 v{10+j}, s[28:31], s63 offen lds")
                else:
                    out.append(f"s_add_u32 s63, s60, {st*64*ldw}\ns_and_b32 m0, s54, 1\ns_lshl_b32 m0, m0, 10\ns_add_u32 m0, m0, {buf + 16384 + 16*1024}\ns_nop 0\nbuffer_load_dwordx4 v{10+j}, s[28:31], s63 offen lds")
        return out
    AB = 16
    WB = 32
    k("v_lshrrev_b32 v5, 1, v4")
    if mode == 'a':
        k("s_lshr_b32 s58, s54, 1")
        k("s_mul_i32 s58, s58, 8192")
        k("v_lshl_add_u32 v6, v4, 7, s58")
        for kk in range(2):
            k(f"v_add_u32 v7, {4*kk}, v3")
            k("v_xor_b32 v7, v7, v5")
            k("v_lshl_add_u32 v7, v7, 4, v6")
            for b in range(3):
                k(f"v_add_u32 v{AB + b*2 + kk}, {b*STG}, v7")
        k("v_lshrrev_b32 v5, 2, v4")
        k("v_lshl_add_u32 v6, v3, 3, v5")
        k("v_lshlrev_b32 v6, 8, v6")
        k("v_and_b32 v7, 3, v1")
        k("v_lshl_add_u32 v6, v7, 3, v6")
        k("v_and_b32 v7, 1, v3")
        k("v_lshl_or_b32 v5, v7, 2, v5")
        k("s_and_b32 s58, s54, 1")
        if kind == 'qkv':
            k("s_lshl_b32 s58, s58, 14")
            k("s_add_u32 s58, s58, 16384")
            k("v_add_u32 v6, s58, v6")
            for t in range(8):
                k(f"v_xor_b32 v7, {t}, v5")
                k("v_lshl_add_u32 v7, v7, 5, v6")
                for b in range(3):
                    k(f"v_add_u32 v{WB + b*8 + t}, {b*STG}, v7")
        else:
            k("s_lshl_b32 s58, s58, 2")
            k("v_add_u32 v6, 16384, v6")
            for t in range(4):
                k(f"v_add_u32 v7, {t}, s58") if False else None
                k(f"s_add_u32 s59, s58, {t}")
                k("v_xor_b32 v7, s59, v5")
                k("v_lshl_add_u32 v7, v7, 5, v6")
                for b in range(3):
                    k(f"v_add_u32 v{WB + b*8 + t}, {b*STG}, v7")
                    k(f"v_add_u32 v{WB + b*8 + 4 + t}, {b*STG + 16384}, v7")
    else:
        k("s_mul_i32 s58, s54, 4096")
        k("v_lshl_add_u32 v6, v4, 7, s58")
        k("v_and_b32 v7, 1, v3")
        k("v_lshl_add_u32 v6, v7, 3, v6")
        k("v_lshrrev_b32 v7, 1, v3")
        k("v_xor_b32 v5, v7, v5")
        for q in range(4):
            k(f"v_xor_b32 v7, {2*q}, v5")
            k("v_lshl_add_u32 v7, v7, 4, v6")
            for b in range(3):
                k(f"v_add_u32 v{AB + b*4 + q}, {b*STG}, v7")
        k("v_lshrrev_b32 v5, 2, v4")
        k("v_lshl_add_u32 v5, v3, 2, v5")
        k("v_mul_u32_u24 v5, 288, v5")
        k("v_and_b32 v7, 3, v1")
        k("v_lshl_add_u32 v5, v7, 3, v5")
        for b in range(3):
            k(f"v_add_u32 v{WB + b}, {b*STG + 16384}, v5")
    FR = 64
    FSZ = (TM + TN) * 4
    def fa(s, mt): return FR + s*FSZ + mt*4
    def fw(s, t): return FR + s*FSZ + TM*4 + t*4
    def reads(st, kk, s):
        b = st % 3
        out = []
        for mt in range(TM):
            r = fa(s, mt)
            if mode == 'a':
                out.append(f"ds_read_b128 v[{r}:{r+3}], v{AB + b*2 + kk} offset:{mt*2048}")
            else:
                out.append(f"ds_read_b64 v[{r}:{r+1}], v{AB + b*4 + 2*kk} offset:{mt*2048}")
                out.append(f"ds_read_b64 v[{r+2}:{r+3}], v{AB + b*4 + 2*kk+1} offset:{mt*2048}")
        for t in range(TN):
            r = fw(s, t)
            if mode == 'a':
                out.append(f"ds_read_b64_tr_b16 v[{r}:{r+1}], v{WB + b*8 + t} offset:{kk*8192}")
                out.append(f"ds_read_b64_tr_b16 v[{r+2}:{r+3}], v{WB + b*8 + t} offset:{kk*8192 + 1024}")
            else:
                out.append(f"ds_read_b64_tr_b16 v[{r}:{r+1}], v{WB + b} offset:{kk*32*288 + t*32}")
                out.append(f"ds_read_b64_tr_b16 v[{r+2}:{r+3}], v{WB + b} offset:{kk*32*288 + 16*288 + t*32}")
        return out
    def acc(t, mt): return (t*TM + mt) * 4
    def mfmas(s):
        out = []
        for t in range(TN):
            for mt in range(TM):
                a = acc(t, mt)
                out.append(f"v_mfma_f32_16x16x32_bf16 a[{a}:{a+3}], v[{fw(s,t)}:{fw(s,t)+3}], v[{fa(s,mt)}:{fa(s,mt)+3}], a[{a}:{a+3}]")
        return out
    def interleave(mf, others):
        n = len(mf); m = len(others); j = 0
        for i, x in enumerate(mf):
            k(x)
            tgt = (i + 1) * m // n
            while j < tgt:
                k(others[j]); j += 1
    for i in range(TM*TN*4):
        k(f"v_accvgpr_write_b32 a{i}, 0")
    for st in range(min(3, NST)):
        for x in dma_stage(st): k(x)
    k(f"s_waitcnt vmcnt({2*NDMA})")
    k("s_barrier")
    for x in reads(0, 0, 0): k(x)
    for st in range(NST):
        k("s_waitcnt lgkmcnt(0)")
        interleave(mfmas(0), reads(st, 1, 1))
        k("s_waitcnt lgkmcnt(0)")
        oth = []
        if st + 1 < NST:
            k(f"s_waitcnt vmcnt({NDMA if st + 2 < NST else 0})")
            k("s_barrier")
            oth = reads(st+1, 0, 0)
            if st + 3 < NST:
                oth = dma_stage(st+3) + oth
        interleave(mfmas(1), oth)
    k("s_nop 7"); k("s_nop 7")
    if mode == 'a':
        k("s_lshr_b32 s58, s54, 1"); k("s_lshl_b32 s58, s58, 6")
    else:
        k("s_lshl_b32 s58, s54, 5")
    k("s_lshl_b32 s59, s45, 7"); k("s_add_u32 s58, s58, s59")
    k("v_add_u32 v5, s58, v4")
    E = 64
    if kind == 'qkv':
        k("s_movk_i32 s59, 24576")
        k("v_mul_lo_u32 v5, v5, s59")
        k("v_lshl_add_u32 v5, v3, 3, v5")
        k("s_and_b32 s58, s54, 1"); k("s_lshl_b32 s58, s58, 8"); k("s_add_u32 s50, s50, s58")
        for mt in range(TM):
            k(f"s_add_u32 s58, s50, {mt*16*24576}")
            for t in range(TN):
                a = acc(t, mt); e = E + ((t*TM+mt) % 8) * 8
                for r in range(4): k(f"v_accvgpr_read_b32 v{e+r}, a{a+r}")
                k(f"v_cvt_pk_bf16_f32 v{e+4}, v{e}, v{e+1}")
                k(f"v_cvt_pk_bf16_f32 v{e+5}, v{e+2}, v{e+3}")
                k(f"buffer_store_dwordx2 v[{e+4}:{e+5}], v5, s[24:27], s58 offen offset:{t*32}")
    elif kind == 'up':
        k("s_movk_i32 s59, 9216")
        k("v_mul_lo_u32 v5, v5, s59")
        k("v_lshl_add_u32 v5, v3, 3, v5")
        k("s_and_b32 s58, s54, 1"); k("s_lshl_b32 s58, s58, 7"); k("s_add_u32 s50, s50, s58")
        k("s_mov_b32 s40, 0x3d372713")
        k("s_mov_b32 s41, 0xc0135761")
        for mt in range(TM):
            k(f"s_add_u32 s58, s50, {mt*16*9216}")
            for t in range(4):
                ag = acc(t, mt); au = acc(t+4, mt); e = E + ((t*TM+mt) % 4) * 24
                for r in range(4): k(f"v_accvgpr_read_b32 v{e+r}, a{ag+r}")
                for r in range(4): k(f"v_accvgpr_read_b32 v{e+4+r}, a{au+r}")
                k(f"v_cvt_pk_bf16_f32 v{e+8}, v{e}, v{e+1}")
                k(f"v_cvt_pk_bf16_f32 v{e+9}, v{e+2}, v{e+3}")
                k(f"v_cvt_pk_bf16_f32 v{e+10}, v{e+4}, v{e+5}")
                k(f"v_cvt_pk_bf16_f32 v{e+11}, v{e+6}, v{e+7}")
                for r in range(4):
                    src = e+8+(r>>1); us = e+10+(r>>1)
                    if r & 1:
                        k(f"v_and_b32 v{e+r}, 0xffff0000, v{src}"); k(f"v_and_b32 v{e+4+r}, 0xffff0000, v{us}")
                    else:
                        k(f"v_lshlrev_b32 v{e+r}, 16, v{src}"); k(f"v_lshlrev_b32 v{e+4+r}, 16, v{us}")
                for r in range(4):
                    x = e+r; y = e+12+r
                    k(f"v_mul_f32 v{y}, v{x}, v{x}")
                    k(f"v_mul_f32 v{y}, v{y}, v{x}")
                    k(f"v_fma_f32 v{y}, v{y}, s40, v{x}")
                    k(f"v_mul_f32 v{y}, s41, v{y}")
                    k(f"v_exp_f32 v{y}, v{y}")
                for r in range(4):
                    y = e+12+r
                    k(f"v_add_f32 v{y}, 1.0, v{y}")
                for r in range(4):
                    y = e+12+r
                    k(f"v_rcp_f32 v{y}, v{y}")
                k("s_nop 0")
                for r in range(4):
                    k(f"v_mul_f32 v{e+r}, v{e+r}, v{e+12+r}")
                k(f"v_cvt_pk_bf16_f32 v{e+8}, v{e}, v{e+1}")
                k(f"v_cvt_pk_bf16_f32 v{e+9}, v{e+2}, v{e+3}")
                k(f"v_lshlrev_b32 v{e}, 16, v{e+8}"); k(f"v_and_b32 v{e+1}, 0xffff0000, v{e+8}")
                k(f"v_lshlrev_b32 v{e+2}, 16, v{e+9}"); k(f"v_and_b32 v{e+3}, 0xffff0000, v{e+9}")
                for r in range(4):
                    k(f"v_mul_f32 v{e+r}, v{e+r}, v{e+4+r}")
                k(f"v_cvt_pk_bf16_f32 v{e+16}, v{e}, v{e+1}")
                k(f"v_cvt_pk_bf16_f32 v{e+17}, v{e+2}, v{e+3}")
                k(f"buffer_store_dwordx2 v[{e+16}:{e+17}], v5, s[24:27], s58 offen offset:{t*32}")
    else:
        k("s_movk_i32 s59, 2304")
        k("v_mul_lo_u32 v5, v5, s59")
        k("v_lshl_add_u32 v5, v3, 4, v5")
        k(f"s_mul_i32 s58, s46, {S*D*4}"); k("s_add_u32 s50, s50, s58")
        for mt in range(TM):
            k(f"s_add_u32 s58, s50, {mt*16*2304}")
            for t in range(TN):
                a = acc(t, mt); e = E + ((t*TM+mt) % 8) * 4
                for r in range(4): k(f"v_accvgpr_read_b32 v{e+r}, a{a+r}")
                k(f"buffer_store_dwordx4 v[{e}:{e+3}], v5, s[24:27], s58 offen offset:{t*64}")
    k(f"{Lend}:")
    return k
```

```python
from asmlib import K
from layout import *

WOF = 0
KT = 131072
VT = 139264
WSTG = 131072
MEMB = 147456
MPITCH = 1168
QX = 156800
QPITCH = 784
LDS_BYTES = 163840
NHEAD_WG = 32
NRED_WG = 36
POLL_LIMIT = 400000
import os
RSLEEP = int(os.environ.get('RSLEEP', '90'))
HSLEEP = int(os.environ.get('HSLEEP', '25'))

def wreg(f):
    if f < 64:
        return f"a[{4*f}:{4*f+3}]", lambda lo, hi: f"a[{4*f+lo}:{4*f+hi}]"
    b = 80 + 4*(f-64)
    return f"v[{b}:{b+3}]", lambda lo, hi: f"v[{b+lo}:{b+hi}]"

def k_rec(nsteps=64, prof=False):
    k = K("rec_kernel")
    def stamp(i):
        if prof:
            k(f"s_memrealtime s[{64+2*i}:{65+2*i}]")
    def flush(n, tmp):
        if prof:
            k("s_waitcnt lgkmcnt(0)")
            k.srd_off(84, 12, 13, OFF_DBG, 1<<20)
            k("s_lshl_b32 s88, s2, 6"); k("s_add_u32 s88, s88, s46"); k("s_lshl_b32 s88, s88, 6")
            k("s_lshl_b32 s89, s14, 24"); k("s_add_u32 s88, s88, s89")
            k("s_mov_b64 exec, 1")
            for i in range(n):
                k(f"v_mov_b32 v{tmp}, s{64+2*i}")
                k(f"buffer_store_dword v{tmp}, off, s[84:87], s88 offset:{4*i}")
            k("s_mov_b64 exec, -1")
    k.vgpr = 512; k.accum = 256; k.sgpr = 96
    Lend = k.label("end"); Lred = k.label("red")
    k(f"s_cmp_ge_u32 s2, {NHEAD_WG + NRED_WG}")
    k(f"s_cbranch_scc1 {Lend}")
    k(f"s_load_dwordx4 s[4:7], s[0:1], {KA['Wq']}")
    k(f"s_load_dwordx4 s[8:11], s[0:1], {KA['Wv']}")
    k(f"s_load_dwordx2 s[12:13], s[0:1], {KA['ws']}")
    k("v_and_b32 v1, 63, v0")
    k("v_lshrrev_b32 v2, 6, v0")
    k("s_nop 0")
    k("v_readfirstlane_b32 s14, v2")
    k("s_waitcnt lgkmcnt(0)")
    k.srd_off(16, 12, 13, OFF_PART, PART_BYTES)
    k.srd_off(20, 12, 13, OFF_MEM, 65*9216)
    k(f"s_cmp_ge_u32 s2, {NHEAD_WG}")
    k(f"s_cbranch_scc1 {Lred}")
    k.srd_off(24, 12, 13, OFF_QKV, S*12288*2)
    k.srd_off(28, 12, 13, OFF_KVM, 64*8*16384)
    k("v_lshrrev_b32 v3, 4, v1")
    k("v_and_b32 v4, 15, v1")
    k("s_lshl_b32 s15, s2, 8")
    k("v_lshlrev_b32 v5, 13, v3")
    k("v_lshl_add_u32 v5, v4, 4, v5")
    k("v_lshrrev_b32 v6, 2, v4")
    k("v_lshl_add_u32 v6, v3, 3, v6")
    k("v_lshlrev_b32 v6, 8, v6")
    k("v_and_b32 v7, 3, v1")
    k("v_lshl_add_u32 v6, v7, 3, v6")
    k("s_mul_i32 s32, s14, 36")
    for mat in range(3):
        lo = 4 + 2*mat
        k.srd(36, lo, lo+1, 576*4096*2)
        k("s_barrier")
        k(f"s_mul_i32 s33, s32, {4*8192}")
        k("s_add_u32 s33, s33, s15")
        k("s_lshl_b32 s34, s32, 10")
        for i in range(36):
            k(f"s_add_u32 s35, s33, {i*4*8192}")
            k(f"s_add_u32 m0, s34, {i*1024}")
            k("s_nop 0")
            k("buffer_load_dwordx4 v5, s[36:39], s35 offen lds")
        k("s_waitcnt vmcnt(0)")
        k("s_barrier")
        for w in range(4):
            tiles = [(i, (6*w+i) % 8) for i in range(6) if (6*w+i)//8 == mat]
            if not tiles: continue
            Ls = k.label("sk")
            k(f"s_cmp_lg_u32 s14, {w}")
            k(f"s_cbranch_scc1 {Ls}")
            for (i, t) in tiles:
                for ks in range(18):
                    _, rr = wreg(i*18 + ks)
                    off = ks*32*256 + t*32
                    vb = 8
                    if ks % 6 == 0:
                        k(f"v_add_u32 v{vb}, {(ks//6)*6*8192}, v6")
                    o2 = off - (ks//6)*6*8192
                    k(f"ds_read_b64_tr_b16 {rr(0,1)}, v{vb} offset:{o2}")
                    k(f"ds_read_b64_tr_b16 {rr(2,3)}, v{vb} offset:{o2+1024}")
                k("s_waitcnt lgkmcnt(0)")
            k(f"{Ls}:")
    k.srd(36, 10, 11, 4096*576*2)
    k("s_mul_i32 s33, s2, 147456")
    k("v_lshlrev_b32 v5, 4, v1")
    k("v_lshrrev_b32 v6, 2, v4")
    k("v_lshl_add_u32 v6, v3, 2, v6")
    k("v_mul_u32_u24 v6, 1152, v6")
    k("v_lshl_add_u32 v6, v7, 3, v6")
    k("s_mul_i32 s34, s14, 288")
    k(f"s_add_u32 s34, s34, {WSTG}")
    k("v_add_u32 v6, s34, v6")
    k("s_lshl_b32 s34, s14, 15")
    k("v_lshl_add_u32 v8, v1, 4, s34")
    for u in range(8):
        k("s_barrier")
        for i in range(5):
            Ls = None
            if i == 4:
                Ls = k.label("sk"); k("s_cmp_ge_u32 s14, 2"); k(f"s_cbranch_scc1 {Ls}")
            k(f"s_add_u32 s35, s14, {4*i}")
            k("s_lshl_b32 s35, s35, 10")
            k(f"s_add_u32 m0, s35, {WSTG}")
            k(f"s_add_u32 s35, s35, {u*18432}")
            k("s_add_u32 s35, s35, s33")
            k("buffer_load_dwordx4 v5, s[36:39], s35 offen lds")
            if Ls: k(f"{Ls}:")
        k("s_waitcnt vmcnt(0)")
        k("s_barrier")
        j = u >> 1; half = u & 1
        for ct in range(9):
            k(f"ds_read_b64_tr_b16 v[{16+2*ct}:{17+2*ct}], v6 offset:{ct*32}")
        k("s_waitcnt lgkmcnt(0)")
        for ct in range(8):
            k(f"ds_write_b64 v8, v[{16+2*ct}:{17+2*ct}] offset:{(ct*4+j)*1024 + half*8}")
        k(f"v_mov_b32 v{64+4*j+2*half}, v32")
        k(f"v_mov_b32 v{64+4*j+2*half+1}, v33")
        k("s_waitcnt lgkmcnt(0)")
    k("s_barrier")
    k("v_and_b32 v9, 7, v1")
    k(f"v_mul_u32_u24 v2, {MPITCH}, v9")
    k("v_lshl_add_u32 v2, v3, 4, v2")
    k(f"v_add_u32 v2, {MEMB}, v2")
    k(f"v_mul_u32_u24 v5, {QPITCH}, v4")
    k("v_lshl_add_u32 v5, v3, 3, v5")
    k("s_mul_i32 s34, s14, 192")
    k(f"s_add_u32 s34, s34, {QX}")
    k("v_add_u32 v5, s34, v5")
    k(f"v_mul_u32_u24 v6, {QPITCH}, v9")
    k("v_lshl_add_u32 v6, v3, 4, v6")
    k(f"v_add_u32 v6, {QX}, v6")
    k("v_xor_b32 v7, v3, v4")
    k("v_lshlrev_b32 v7, 4, v7")
    k("v_lshl_add_u32 v7, v4, 8, v7")
    k(f"v_add_u32 v7, {KT}, v7")
    k("v_lshrrev_b32 v10, 2, v4")
    k("v_lshl_add_u32 v10, v3, 2, v10")
    k("v_and_b32 v11, 7, v10")
    k("v_lshlrev_b32 v8, 8, v10")
    k("v_lshl_add_u32 v8, v11, 5, v8")
    k("v_and_b32 v12, 3, v1")
    k("v_lshl_add_u32 v8, v12, 3, v8")
    k(f"v_add_u32 v8, {VT}, v8")
    k(f"v_mul_u32_u24 v9, {QPITCH}, v11")
    k("v_lshl_add_u32 v9, v12, 3, v9")
    k(f"v_add_u32 v9, {QX + 512}, v9")
    k("s_lshl_b32 s34, s14, 15")
    k("v_lshl_add_u32 v10, v1, 4, s34")
    k("v_lshlrev_b32 v11, 6, v4")
    k("v_lshl_add_u32 v11, v3, 4, v11")
    k("s_mul_i32 s34, s14, 4608")
    k("v_add_u32 v11, s34, v11")
    k("v_lshlrev_b32 v12, 14, v4")
    k("v_lshl_add_u32 v12, v3, 3, v12")
    k("v_add_u32 v12, s15, v12")
    k("v_lshlrev_b32 v13, 4, v0")
    k("v_add_u32 v14, 512, v0")
    k("v_min_u32 v14, 575, v14")
    k("s_mov_b32 s34, 58255")
    def lds_chunk(dst, qreg):
        k(f"v_mul_lo_u32 v16, {qreg}, s34")
        k("v_lshrrev_b32 v16, 22, v16")
        k("v_mul_u32_u24 v17, 72, v16")
        k(f"v_sub_u32 v17, {qreg}, v17")
        k(f"v_mul_u32_u24 v16, {MPITCH}, v16")
        k("v_lshl_add_u32 v16, v17, 4, v16")
        k(f"v_add_u32 {dst}, {MEMB}, v16")
    k("v_add_u32 v18, 256, v0")
    lds_chunk("v15", "v14")
    lds_chunk("v19", "v18")
    lds_chunk("v18", "v0")
    k("v_lshlrev_b32 v14, 4, v14")
    k("v_mov_b32 v0, v18")
    k("v_cmp_gt_u32 s[40:41], 8, v4")
    k("v_cmp_lt_u32 s[42:43], 31, v1")
    k("s_lshl_b32 s34, s14, 2")
    k("v_add_u32 v20, s34, v3")
    k("s_movk_i32 s35, 24576")
    k("v_mul_lo_u32 v21, v20, s35")
    k("v_xor_b32 v22, v20, v4")
    k("v_lshl_add_u32 v1, v22, 4, v21")
    k("v_lshrrev_b32 v22, 1, v4")
    k("v_and_b32 v23, 7, v20")
    k("v_xor_b32 v22, v22, v23")
    k("v_lshlrev_b32 v22, 1, v22")
    k("v_and_b32 v23, 1, v4")
    k("v_or_b32 v22, v22, v23")
    k("v_lshl_add_u32 v3, v22, 4, v21")
    k("v_mov_b32 v4, v19")
    k("s_mov_b32 s44, 0x3db504f3")
    k("s_mov_b32 s45, 0x3fb8aa3b")
    k("s_mov_b32 s46, 0")
    k("s_lshl_b32 s54, s14, 10")
    def kv_dma(step_sreg):
        k(f"s_mul_i32 s47, {step_sreg}, {32*24576}")
        k("s_add_u32 s47, s47, s15")
        k("s_add_u32 s47, s47, 8192")
        k(f"s_add_u32 m0, s54, {KT}")
        k(f"s_add_u32 s35, s47, {16*24576}")
        k("buffer_load_dwordx4 v1, s[24:27], s47 offen lds")
        k(f"s_add_u32 m0, s54, {KT+4096}")
        k("s_add_u32 s47, s47, 8192")
        k("buffer_load_dwordx4 v1, s[24:27], s35 offen lds")
        k(f"s_add_u32 m0, s54, {VT}")
        k("s_add_u32 s35, s35, 8192")
        k("buffer_load_dwordx4 v3, s[24:27], s47 offen lds")
        k(f"s_add_u32 m0, s54, {VT+4096}")
        k("s_nop 0")
        k("buffer_load_dwordx4 v3, s[24:27], s35 offen lds")
    kv_dma("s46")
    Lstep = k.label("step"); Lpoll = k.label("poll"); Lpd = k.label("pd"); Lfin = k.label("fin")
    k(f"{Lstep}:")
    k("s_mul_i32 s47, s46, 9216")
    k("s_add_u32 s48, s47, 4096")
    k("s_mov_b32 s49, 0")
    k(f"s_sleep {HSLEEP}")
    k(f"{Lpoll}:")
    k("buffer_load_dwordx4 v[16:19], v13, s[20:23], s47 offen sc1")
    k("buffer_load_dwordx4 v[20:23], v13, s[20:23], s48 offen sc1")
    k("buffer_load_dwordx4 v[24:27], v14, s[20:23], s47 offen sc1")
    k("s_waitcnt vmcnt(0)")
    k("v_max3_u32 v28, v16, v17, v18")
    k("v_max3_u32 v29, v19, v20, v21")
    k("v_max3_u32 v30, v22, v23, v24")
    k("v_max3_u32 v31, v25, v26, v27")
    k("v_max3_u32 v28, v28, v29, v30")
    k("v_max_u32 v28, v28, v31")
    k("v_cmp_eq_u32 vcc, -1, v28")
    k(f"s_cbranch_vccz {Lpd}")
    k("s_add_u32 s49, s49, 1")
    k(f"s_cmp_lt_u32 s49, {POLL_LIMIT}")
    k(f"s_cbranch_scc1 {Lpoll}")
    k(f"{Lpd}:")
    stamp(0)
    k("ds_write_b128 v0, v[16:19]")
    k("ds_write_b128 v4, v[20:23]")
    k("ds_write_b128 v15, v[24:27]")
    k("s_waitcnt lgkmcnt(0)")
    k("s_barrier")
    stamp(1)
    for p in range(3):
        k(f"ds_read_b128 v[{40+4*p}:{43+4*p}], v2 offset:{p*64}")
    for i in range(24): k(f"v_mov_b32 v{16+i}, 0")
    for ks in range(18):
        k(f"s_waitcnt lgkmcnt({min(2, 17-ks)})")
        b = 40 + 4*(ks % 3)
        for i in range(6):
            nm, _ = wreg(i*18 + ks)
            k(f"v_mfma_f32_16x16x32_bf16 v[{16+4*i}:{19+4*i}], {nm}, v[{b}:{b+3}], v[{16+4*i}:{19+4*i}]")
        if ks + 3 < 18:
            k(f"ds_read_b128 v[{b}:{b+3}], v2 offset:{(ks+3)*64}")
    stamp(2)
    k("s_mul_i32 s47, s46, 131072")
    k("s_mul_i32 s48, s14, 6")
    k("s_mov_b64 exec, s[40:41]")
    k("s_nop 4")
    for i in range(6):
        k(f"v_cvt_pk_bf16_f32 v{40+2*i}, v{16+4*i}, v{17+4*i}")
        k(f"v_cvt_pk_bf16_f32 v{41+2*i}, v{18+4*i}, v{19+4*i}")
        k(f"ds_write_b64 v5, v[{40+2*i}:{41+2*i}] offset:{i*32}")
    k("s_mov_b64 exec, -1")
    k(f"s_cmp_eq_u32 s46, {nsteps-1}")
    k(f"s_cbranch_scc1 {Lfin}")
    k("s_waitcnt vmcnt(0) lgkmcnt(0)")
    k("s_barrier")
    stamp(3)
    def kvm_store():
        k("s_mov_b64 exec, s[40:41]")
        for i in range(6):
            k(f"s_add_u32 s50, s48, {i}")
            k("s_sub_u32 s51, s50, 8")
            k("s_lshr_b32 s52, s51, 3"); k("s_lshl_b32 s52, s52, 13")
            k("s_and_b32 s51, s51, 7"); k("s_lshl_b32 s51, s51, 5")
            k("s_add_u32 s51, s51, s52"); k("s_add_u32 s51, s51, s47")
            k("s_cmp_lt_u32 s50, 8")
            k("s_cselect_b32 s51, 0x7f000000, s51")
            k(f"buffer_store_dwordx2 v[{40+2*i}:{41+2*i}], v12, s[28:31], s51 offen")
        k("s_mov_b64 exec, -1")
    kvm_store()
    SET = [[16, 20, 24, 28], [32, 36, 52, 56]]
    def sreads(ks):
        r = SET[ks & 1]
        k(f"ds_read_b128 v[{r[0]}:{r[0]+3}], v6 offset:{ks*64}")
        k(f"ds_read_b128 v[{r[1]}:{r[1]+3}], v6 offset:{256+ks*64}")
        k(f"v_xor_b32 v60, {ks*64}, v7")
        k(f"ds_read_b128 v[{r[2]}:{r[2]+3}], v60")
        k(f"ds_read_b128 v[{r[3]}:{r[3]+3}], v60 offset:4096")
    sreads(0); sreads(1)
    for i in range(12): k(f"v_mov_b32 v{40+i}, 0")
    for ks in range(4):
        k(f"s_waitcnt lgkmcnt({4 if ks < 3 else 0})")
        r = SET[ks & 1]
        for t in range(3):
            k(f"v_mfma_f32_16x16x32_bf16 v[{40+4*t}:{43+4*t}], v[{r[1+t]}:{r[1+t]+3}], v[{r[0]}:{r[0]+3}], v[{40+4*t}:{43+4*t}]")
        if ks + 2 < 4: sreads(ks + 2)
    k("s_lshl_b32 s50, s14, 6")
    for e2 in range(2):
        k(f"s_add_u32 s51, s50, {e2*32}")
        k("v_xor_b32 v60, s51, v8")
        k("v_add_u32 v61, s51, v9")
        k(f"ds_read_b64_tr_b16 v[{16+8*e2}:{17+8*e2}], v60")
        k(f"ds_read_b64_tr_b16 v[{18+8*e2}:{19+8*e2}], v60 offset:4096")
        k(f"ds_read_b64_tr_b16 v[{20+8*e2}:{21+8*e2}], v61")
    k("s_nop 3")
    for i in range(0, 12, 2):
        t = 52 + (i >> 1)
        k(f"v_cvt_pk_bf16_f32 v{t}, v{40+i}, v{41+i}")
    for i in range(0, 12, 2):
        t = 52 + (i >> 1)
        k(f"v_lshlrev_b32 v{40+i}, 16, v{t}")
        k(f"v_and_b32 v{41+i}, 0xffff0000, v{t}")
    for i in range(12):
        k(f"v_mul_f32 v{40+i}, s44, v{40+i}")
    for i in range(0, 12, 2):
        t = 52 + (i >> 1)
        k(f"v_cvt_pk_bf16_f32 v{t}, v{40+i}, v{41+i}")
    for i in range(0, 12, 2):
        t = 52 + (i >> 1)
        k(f"v_lshlrev_b32 v{40+i}, 16, v{t}")
        k(f"v_and_b32 v{41+i}, 0xffff0000, v{t}")
    k("v_mov_b32 v58, 0xff800000")
    for i in range(4):
        k(f"v_cndmask_b32 v{40+i}, v{40+i}, v58, s[42:43]")
    k("v_max3_f32 v52, v40, v41, v42")
    k("v_max3_f32 v53, v43, v44, v45")
    k("v_max3_f32 v54, v46, v47, v48")
    k("v_max3_f32 v55, v49, v50, v51")
    k("v_max3_f32 v52, v52, v53, v54")
    k("v_max_f32 v52, v52, v55")
    def xred(op, r, t):
        k(f"v_mov_b32 v{t}, v{r}")
        k("s_nop 1")
        k(f"v_permlane32_swap_b32 v{r}, v{t}")
        k(f"{op} v{r}, v{r}, v{t}")
        k(f"v_mov_b32 v{t}, v{r}")
        k("s_nop 1")
        k(f"v_permlane16_swap_b32 v{r}, v{t}")
        k(f"{op} v{r}, v{r}, v{t}")
    xred("v_max_f32", 52, 53)
    k("v_mul_f32 v52, s45, v52")
    for i in range(12):
        k(f"v_fma_f32 v{40+i}, v{40+i}, s45, -v52")
    for i in range(12):
        k(f"v_exp_f32 v{40+i}, v{40+i}")
    k("s_nop 0")
    k("v_add_f32 v52, v40, v41"); k("v_add_f32 v53, v42, v43"); k("v_add_f32 v54, v44, v45")
    k("v_add_f32 v55, v46, v47"); k("v_add_f32 v56, v48, v49"); k("v_add_f32 v57, v50, v51")
    k("v_add_f32 v52, v52, v53"); k("v_add_f32 v54, v54, v55"); k("v_add_f32 v56, v56, v57")
    k("v_add_f32 v52, v52, v54"); k("v_add_f32 v52, v52, v56")
    xred("v_add_f32", 52, 53)
    k("v_rcp_f32 v53, v52")
    for i in range(8): k(f"v_mov_b32 v{32+i}, 0")
    for i in range(12):
        k(f"v_mul_f32 v{40+i}, v{40+i}, v53")
    k("v_cvt_pk_bf16_f32 v56, v40, v41"); k("v_cvt_pk_bf16_f32 v57, v42, v43")
    k("v_cvt_pk_bf16_f32 v52, v44, v45"); k("v_cvt_pk_bf16_f32 v53, v46, v47")
    k("v_cvt_pk_bf16_f32 v54, v48, v49"); k("v_cvt_pk_bf16_f32 v55, v50, v51")
    k("s_waitcnt lgkmcnt(0)")
    k("s_nop 0")
    stamp(4)
    for e2 in range(2):
        k(f"v_mfma_f32_16x16x32_bf16 v[{32+4*e2}:{35+4*e2}], v[{16+8*e2}:{19+8*e2}], v[52:55], v[{32+4*e2}:{35+4*e2}]")
    k("s_nop 7")
    for e2 in range(2):
        k(f"v_mfma_f32_16x16x16_bf16 v[{32+4*e2}:{35+4*e2}], v[{20+8*e2}:{21+8*e2}], v[56:57], v[{32+4*e2}:{35+4*e2}]")
    k("s_lshl_b32 s50, s14, 6")
    k("v_add_u32 v44, s50, v6")
    k("s_barrier")
    k("s_nop 5")
    k("v_cvt_pk_bf16_f32 v40, v32, v33"); k("v_cvt_pk_bf16_f32 v41, v34, v35")
    k("v_cvt_pk_bf16_f32 v42, v36, v37"); k("v_cvt_pk_bf16_f32 v43, v38, v39")
    k("s_mov_b64 exec, s[40:41]")
    k("ds_write_b128 v44, v[40:43]")
    k("s_mov_b64 exec, -1")
    NB = 5
    lds_seq = [(ct, j) for ct in range(8) for j in range(4)]
    def issue(idx):
        ct, j = lds_seq[idx]
        b = 44 + 4*(idx % NB)
        k(f"ds_read_b128 v[{b}:{b+3}], v10 offset:{(ct*4+j)*1024}")
    k("s_waitcnt lgkmcnt(0)")
    k("s_barrier")
    stamp(5)
    for j in range(4):
        k(f"ds_read_b128 v[{16+4*j}:{19+4*j}], v6 offset:{j*64}")
    issued = 0
    for p in range(NB): issue(p); issued += 1
    k("s_add_u32 s53, s46, 1")
    kv_dma("s53")
    k("s_mul_i32 s47, s46, 32")
    k("s_add_u32 s47, s47, s2")
    k("s_mul_i32 s47, s47, 18432")
    for i in range(12): k(f"v_mov_b32 v{32+i}, 0")
    order = [8] + list(range(8))
    used = 0
    pend = None
    def store_tile(ct, a):
        k("s_mov_b64 exec, s[40:41]")
        if ct == 8:
            k("s_add_u32 s50, s47, 4096")
            k(f"buffer_store_dwordx4 v[{a}:{a+3}], v11, s[16:19], s50 offen sc1")
        else:
            k(f"buffer_store_dwordx4 v[{a}:{a+3}], v11, s[16:19], s47 offen offset:{ct*512} sc1")
        k("s_mov_b64 exec, -1")
    for n, ct in enumerate(order):
        a = 32 + 4*(n % 3)
        if n >= 3:
            for i in range(4): k(f"v_mov_b32 v{a+i}, 0")
            k("s_nop 1")
        for j in range(4):
            if ct == 8:
                if j == 0: k(f"s_waitcnt lgkmcnt({NB})")
                k(f"v_mfma_f32_16x16x32_bf16 v[{a}:{a+3}], v[{64+4*j}:{67+4*j}], v[{16+4*j}:{19+4*j}], v[{a}:{a+3}]")
            else:
                k(f"s_waitcnt lgkmcnt({issued - used - 1})")
                b = 44 + 4*(used % NB)
                k(f"v_mfma_f32_16x16x32_bf16 v[{a}:{a+3}], v[{b}:{b+3}], v[{16+4*j}:{19+4*j}], v[{a}:{a+3}]")
                used += 1
                if issued < len(lds_seq): issue(issued); issued += 1
        if pend is not None:
            store_tile(*pend)
        pend = (ct, a)
    k("s_nop 7")
    store_tile(*pend)
    stamp(6)
    flush(7, 62)
    k("s_add_u32 s46, s46, 1")
    k(f"s_branch {Lstep}")
    k(f"{Lfin}:")
    kvm_store()
    k(f"s_branch {Lend}")
    k(f"{Lred}:")
    k(f"s_sub_u32 s15, s2, {NHEAD_WG}")
    k("s_lshl_b32 s32, s15, 9")
    k("s_lshl_b32 s33, s14, 7")
    k("s_add_u32 s32, s32, s33")
    k("v_lshrrev_b32 v5, 3, v1")
    k("v_and_b32 v4, 7, v1")
    k("v_mul_u32_u24 v2, 18432, v5")
    k("v_lshl_add_u32 v2, v4, 4, v2")
    k("v_add_u32 v2, s32, v2")
    k("v_lshrrev_b32 v3, 2, v4")
    k("s_lshl_b32 s33, s14, 1")
    k("v_add_u32 v3, s33, v3")
    k("v_mul_u32_u24 v3, 1152, v3")
    k("v_and_b32 v6, 3, v4")
    k("v_lshl_add_u32 v3, v6, 3, v3")
    k("s_lshl_b32 s32, s15, 5")
    k("v_add_u32 v3, s32, v3")
    k("s_mov_b32 s46, 0")
    Lrs = k.label("rs"); Lrp = k.label("rp"); Lrd = k.label("rd")
    k(f"{Lrs}:")
    k(f"s_mul_i32 s47, s46, {32*18432}")
    k("s_mov_b32 s49, 0")
    k(f"s_sleep {RSLEEP}")
    k(f"{Lrp}:")
    for i in range(4):
        k(f"s_add_u32 s48, s47, {i*8*18432}")
        k(f"buffer_load_dwordx4 v[{16+4*i}:{19+4*i}], v2, s[16:19], s48 offen sc1")
    k("s_waitcnt vmcnt(0)")
    for r in range(4):
        k(f"v_add_f32 v{16+r}, v{16+r}, v{20+r}")
        k(f"v_add_f32 v{24+r}, v{24+r}, v{28+r}")
    for r in range(4):
        k(f"v_add_f32 v{16+r}, v{16+r}, v{24+r}")
    k("v_add_f32 v32, v16, v17")
    k("v_add_f32 v33, v18, v19")
    k("v_cmp_u_f32 vcc, v32, v33")
    k(f"s_cbranch_vccz {Lrd}")
    k("s_add_u32 s49, s49, 1")
    k(f"s_cmp_lt_u32 s49, {POLL_LIMIT}")
    k(f"s_cbranch_scc1 {Lrp}")
    k(f"{Lrd}:")
    stamp(0)
    for r in range(4): k(f"v_mov_b32 v{20+r}, v{16+r}")
    k("s_nop 0")
    for r in range(4): k(f"v_permlane32_swap_b32 v{16+r}, v{20+r}")
    for r in range(4): k(f"v_add_f32 v{16+r}, v{16+r}, v{20+r}")
    for r in range(4): k(f"v_mov_b32 v{20+r}, v{16+r}")
    k("s_nop 0")
    for r in range(4): k(f"v_permlane16_swap_b32 v{16+r}, v{20+r}")
    for r in range(4): k(f"v_add_f32 v{16+r}, v{16+r}, v{20+r}")
    k("s_nop 1")
    for r in range(4): k(f"v_add_f32_dpp v{16+r}, v{16+r}, v{16+r} row_ror:8 row_mask:0xf bank_mask:0xf")
    k("v_cvt_pk_bf16_f32 v4, v16, v17")
    k("v_cvt_pk_bf16_f32 v5, v18, v19")
    k("v_min_u32 v4, 0xfffffffe, v4")
    k("v_min_u32 v5, 0xfffffffe, v5")
    k("s_add_u32 s48, s46, 1")
    k("s_mul_i32 s48, s48, 9216")
    k("s_mov_b64 exec, 0xff")
    k("buffer_store_dwordx2 v[4:5], v3, s[20:23], s48 offen sc1")
    k("s_mov_b64 exec, -1")
    if prof:
        k("s_mov_b32 s66, s49")
        flush(2, 6)
    k("s_add_u32 s46, s46, 1")
    k(f"s_cmp_lt_u32 s46, {nsteps-1}")
    k(f"s_cbranch_scc1 {Lrs}")
    k(f"{Lend}:")
    return k
```

```python
from asmlib import K
from layout import *

NMODWG = 27
NFILLWG = 512

def k_mod():
    k = K("mod_kernel")
    k.vgpr = 96; k.accum = 96; k.sgpr = 48
    k(f"s_load_dwordx2 s[4:5], s[0:1], {KA['c']}")
    k(f"s_load_dwordx2 s[6:7], s[0:1], {KA['wmod']}")
    k(f"s_load_dwordx2 s[8:9], s[0:1], {KA['ws']}")
    k("s_waitcnt lgkmcnt(0)")
    Lfill = k.label("fill"); Lend = k.label("end")
    k(f"s_cmp_ge_u32 s2, {NMODWG}")
    k(f"s_cbranch_scc1 {Lfill}")
    k.srd(12, 4, 5, 576*2)
    k.srd(16, 6, 7, 576*3456*2)
    k.srd_off(20, 8, 9, OFF_MOD, 6*576*4)
    k("v_lshrrev_b32 v1, 6, v0")
    k("v_and_b32 v2, 63, v0")
    k("s_nop 0")
    k("v_readfirstlane_b32 s24, v1")
    k("s_mul_i32 s25, s24, 144")
    k("v_add_u32 v3, s25, v2")
    k("v_lshlrev_b32 v3, 1, v3")
    k("buffer_load_ushort v10, v3, s[12:15], 0 offen")
    k("buffer_load_ushort v11, v3, s[12:15], 0 offen offset:128")
    k("buffer_load_ushort v12, v3, s[12:15], 0 offen offset:256")
    k("s_lshl_b32 s26, s2, 8")
    k("v_lshl_add_u32 v4, v2, 2, s26")
    k("s_mul_i32 s27, s25, 6912")
    k("s_waitcnt vmcnt(0)")
    k("s_mov_b32 s30, 0xbfb8aa3b")
    for r in (10, 11, 12):
        k(f"v_lshlrev_b32 v{r}, 16, v{r}")
        k(f"v_mul_f32 v5, s30, v{r}")
        k("v_exp_f32 v5, v5")
        k("s_nop 0")
        k("v_add_f32 v5, 1.0, v5")
        k("v_rcp_f32 v6, v5")
        k("s_nop 0")
        k(f"v_mul_f32 v7, v{r}, v6")
        k(f"v_fma_f32 v8, -v7, v5, v{r}")
        k("v_fma_f32 v7, v8, v6, v7")
        k("v_cvt_pk_bf16_f32 v7, v7, v7")
        k(f"v_lshlrev_b32 v{r}, 16, v7")
    k("v_mov_b32 v20, 0")
    k("v_mov_b32 v21, 0")
    B = 48
    for b0 in range(0, 144, B):
        for i in range(B):
            r = b0 + i
            k(f"s_add_u32 s28, s27, {r*6912}")
            k(f"buffer_load_dword v{32+i}, v4, s[16:19], s28 offen")
        for i in range(B):
            r = b0 + i
            k(f"v_readlane_b32 s29, v{10 + r//64}, {r%64}")
            if i == 0:
                k("s_waitcnt vmcnt(0)")
            k(f"v_lshlrev_b32 v22, 16, v{32+i}")
            k(f"v_and_b32 v23, 0xffff0000, v{32+i}")
            k("v_fmac_f32 v20, s29, v22")
            k("v_fmac_f32 v21, s29, v23")
    k("v_lshlrev_b32 v5, 3, v0")
    k("ds_write_b64 v5, v[20:21]")
    k("s_waitcnt lgkmcnt(0)")
    k("s_barrier")
    k("s_cmp_lg_u32 s24, 0")
    k(f"s_cbranch_scc1 {Lend}")
    k("ds_read_b64 v[24:25], v5 offset:512")
    k("ds_read_b64 v[26:27], v5 offset:1024")
    k("ds_read_b64 v[28:29], v5 offset:1536")
    k("s_waitcnt lgkmcnt(0)")
    k("v_add_f32 v20, v20, v24"); k("v_add_f32 v21, v21, v25")
    k("v_add_f32 v26, v26, v28"); k("v_add_f32 v27, v27, v29")
    k("v_add_f32 v20, v20, v26"); k("v_add_f32 v21, v21, v27")
    k("v_cvt_pk_bf16_f32 v22, v20, v21")
    k("v_lshlrev_b32 v20, 16, v22")
    k("v_and_b32 v21, 0xffff0000, v22")
    k("v_lshrrev_b32 v6, 1, v4")
    k("v_add_f32 v24, 1.0, v20"); k("v_add_f32 v25, 1.0, v21")
    k("v_cvt_pk_bf16_f32 v22, v24, v25")
    k("v_lshlrev_b32 v24, 16, v22")
    k("v_and_b32 v25, 0xffff0000, v22")
    k("v_subrev_u32 v7, 576, v6")
    k("v_cmp_gt_u32 s[32:33], 576, v7") if False else None
    k("s_movk_i32 s34, 576")
    k("v_cmp_gt_u32 s[32:33], s34, v7")
    k("v_subrev_u32 v7, 2304, v6")
    k("v_cmp_gt_u32 s[36:37], s34, v7")
    k("s_nop 1")
    k("s_or_b64 s[32:33], s[32:33], s[36:37]")
    k("v_cndmask_b32 v20, v20, v24, s[32:33]")
    k("v_cndmask_b32 v21, v21, v25, s[32:33]")
    k("v_lshlrev_b32 v6, 2, v6")
    k("buffer_store_dwordx2 v[20:21], v6, s[20:23], 0 offen")
    k(f"s_branch {Lend}")
    k(f"{Lfill}:")
    k(f"s_cmp_ge_u32 s2, {NMODWG + NFILLWG}")
    k(f"s_cbranch_scc1 {Lend}")
    k.srd_off(12, 8, 9, OFF_PART, FILL_BYTES)
    k(f"s_sub_u32 s24, s2, {NMODWG}")
    k("s_lshl_b32 s24, s24, 12")
    k("v_lshl_add_u32 v1, v0, 4, s24")
    k("v_mov_b32 v4, -1"); k("v_mov_b32 v5, -1"); k("v_mov_b32 v6, -1"); k("v_mov_b32 v7, -1")
    for i in range(FILL_BYTES // (2*MB)):
        k(f"s_mov_b32 s25, {i*2*MB}")
        k("buffer_store_dwordx4 v[4:7], v1, s[12:15], s25 offen")
    k(f"{Lend}:")
    return k

def ln_core(k, xr, modsrd, sh_off, sc_off, voff_col, outs):
    MS = 100
    MH = 172
    k(f"s_mov_b32 s41, {sc_off}")
    k(f"s_mov_b32 s42, {sh_off}")
    for i in range(9):
        for hh in range(2):
            k(f"buffer_load_dwordx4 v[{MS+i*8+hh*4}:{MS+i*8+hh*4+3}], {voff_col}, s[{modsrd}:{modsrd+3}], s41 offen offset:{i*256 + hh*16}")
            k(f"buffer_load_dwordx4 v[{MH+i*8+hh*4}:{MH+i*8+hh*4+3}], {voff_col}, s[{modsrd}:{modsrd+3}], s42 offen offset:{i*256 + hh*16}")
    T = 244
    k(f"v_mov_b32 v{T}, 0"); k(f"v_mov_b32 v{T+1}, 0")
    for j in range(36):
        k(f"v_lshlrev_b32 v{T+2}, 16, v{xr+j}")
        k(f"v_and_b32 v{T+3}, 0xffff0000, v{xr+j}")
        k(f"v_add_f32 v{T}, v{T}, v{T+2}")
        k(f"v_add_f32 v{T+1}, v{T+1}, v{T+3}")
    k(f"v_add_f32 v{T}, v{T}, v{T+1}")
    def red8(r, t):
        for off in (0x041F, 0x081F, 0x101F):
            k(f"ds_swizzle_b32 v{t}, v{r} offset:{off}")
            k("s_waitcnt lgkmcnt(0)")
            k(f"v_add_f32 v{r}, v{r}, v{t}")
    red8(T, T+2)
    k(f"s_mov_b32 s40, 0x{0x3ae38e39:08x}")
    k(f"v_mul_f32 v{T}, s40, v{T}")
    k(f"v_mov_b32 v{T+1}, 0"); k(f"v_mov_b32 v{T+4}, 0")
    for j in range(36):
        k(f"v_lshlrev_b32 v{T+2}, 16, v{xr+j}")
        k(f"v_and_b32 v{T+3}, 0xffff0000, v{xr+j}")
        k(f"v_sub_f32 v{T+2}, v{T+2}, v{T}")
        k(f"v_sub_f32 v{T+3}, v{T+3}, v{T}")
        k(f"v_fmac_f32 v{T+1}, v{T+2}, v{T+2}")
        k(f"v_fmac_f32 v{T+4}, v{T+3}, v{T+3}")
    k(f"v_add_f32 v{T+1}, v{T+1}, v{T+4}")
    red8(T+1, T+2)
    k(f"v_mul_f32 v{T+1}, s40, v{T+1}")
    k(f"v_cvt_pk_bf16_f32 v{T+2}, v{T}, v{T+1}")
    k(f"v_lshlrev_b32 v{T}, 16, v{T+2}")
    k(f"v_and_b32 v{T+1}, 0xffff0000, v{T+2}")
    k(f"v_add_f32 v{T+1}, 0x3727c5ac, v{T+1}")
    k(f"v_cvt_pk_bf16_f32 v{T+2}, v{T+1}, v{T+1}")
    k(f"v_lshlrev_b32 v{T+1}, 16, v{T+2}")
    k(f"v_sqrt_f32 v{T+1}, v{T+1}")
    k("s_nop 0")
    k(f"v_cvt_pk_bf16_f32 v{T+2}, v{T+1}, v{T+1}")
    k(f"v_lshlrev_b32 v{T+1}, 16, v{T+2}")
    k(f"v_rcp_f32 v{T+4}, v{T+1}")
    k("s_waitcnt vmcnt(0)")
    for j in range(36):
        a, b = T+2, T+3
        k(f"v_lshlrev_b32 v{a}, 16, v{xr+j}")
        k(f"v_and_b32 v{b}, 0xffff0000, v{xr+j}")
        k(f"v_sub_f32 v{a}, v{a}, v{T}")
        k(f"v_sub_f32 v{b}, v{b}, v{T}")
        k(f"v_cvt_pk_bf16_f32 v{T+5}, v{a}, v{b}")
        k(f"v_lshlrev_b32 v{a}, 16, v{T+5}")
        k(f"v_and_b32 v{b}, 0xffff0000, v{T+5}")
        k(f"v_mul_f32 v{T+6}, v{a}, v{T+4}")
        k(f"v_mul_f32 v{T+7}, v{b}, v{T+4}")
        k(f"v_fma_f32 v{T+8}, -v{T+6}, v{T+1}, v{a}")
        k(f"v_fma_f32 v{T+9}, -v{T+7}, v{T+1}, v{b}")
        k(f"v_fma_f32 v{T+6}, v{T+8}, v{T+4}, v{T+6}")
        k(f"v_fma_f32 v{T+7}, v{T+9}, v{T+4}, v{T+7}")
        k(f"v_cvt_pk_bf16_f32 v{T+5}, v{T+6}, v{T+7}")
        k(f"v_lshlrev_b32 v{a}, 16, v{T+5}")
        k(f"v_and_b32 v{b}, 0xffff0000, v{T+5}")
        k(f"v_mul_f32 v{a}, v{a}, v{MS+2*j}")
        k(f"v_mul_f32 v{b}, v{b}, v{MS+2*j+1}")
        k(f"v_cvt_pk_bf16_f32 v{T+5}, v{a}, v{b}")
        k(f"v_lshlrev_b32 v{a}, 16, v{T+5}")
        k(f"v_and_b32 v{b}, 0xffff0000, v{T+5}")
        k(f"v_add_f32 v{a}, v{a}, v{MH+2*j}")
        k(f"v_add_f32 v{b}, v{b}, v{MH+2*j+1}")
        k(f"v_cvt_pk_bf16_f32 v{xr+j}, v{a}, v{b}")

def k_ln1():
    k = K("ln1_kernel")
    k.sgpr = 48
    Lend = k.label("end")
    k("s_cmp_ge_u32 s2, 64")
    k(f"s_cbranch_scc1 {Lend}")
    k(f"s_load_dwordx2 s[4:5], s[0:1], {KA['x']}")
    k(f"s_load_dwordx2 s[8:9], s[0:1], {KA['ws']}")
    k("s_waitcnt lgkmcnt(0)")
    k.srd(12, 4, 5, S*D*2)
    k.srd_off(16, 8, 9, OFF_MOD, 6*576*4)
    k.srd_off(20, 8, 9, OFF_H1, S*D*2)
    Lnc = k.label("nc")
    k("s_cmp_lg_u32 s2, 0")
    k(f"s_cbranch_scc1 {Lnc}")
    k(f"s_load_dwordx2 s[6:7], s[0:1], {KA['mem0']}")
    k("s_waitcnt lgkmcnt(0)")
    k.srd(24, 6, 7, 9216)
    k.srd_off(28, 8, 9, OFF_MEM, 9216)
    k("v_lshlrev_b32 v1, 4, v0")
    for i in range(3):
        k(f"buffer_load_dwordx4 v[{8+4*i}:{11+4*i}], v1, s[24:27], 0 offen offset:0" if i == 0 else f"s_movk_i32 s32, {4096*i}\nbuffer_load_dwordx4 v[{8+4*i}:{11+4*i}], v1, s[24:27], s32 offen")
    k("s_waitcnt vmcnt(0)")
    for i in range(3):
        k(f"buffer_store_dwordx4 v[{8+4*i}:{11+4*i}], v1, s[28:31], 0 offen offset:0" if i == 0 else f"s_movk_i32 s32, {4096*i}\nbuffer_store_dwordx4 v[{8+4*i}:{11+4*i}], v1, s[28:31], s32 offen")
    k("s_waitcnt vmcnt(0)")
    k(f"{Lnc}:")
    k("v_lshrrev_b32 v1, 3, v0")
    k("s_lshl_b32 s24, s2, 5")
    k("v_add_u32 v1, s24, v1")
    k("s_movk_i32 s25, 1152")
    k("v_mul_lo_u32 v1, v1, s25")
    k("v_and_b32 v2, 7, v0")
    k("v_lshl_add_u32 v1, v2, 4, v1")
    k("v_lshlrev_b32 v3, 5, v2")
    XR = 8
    for i in range(9):
        k(f"buffer_load_dwordx4 v[{XR+4*i}:{XR+4*i+3}], v1, s[12:15], 0 offen offset:{i*128}")
    k("s_waitcnt vmcnt(0)")
    ln_core(k, XR, 16, 0*576*4, 1*576*4, "v3", None)
    for i in range(9):
        k(f"buffer_store_dwordx4 v[{XR+4*i}:{XR+4*i+3}], v1, s[20:23], 0 offen offset:{i*128}")
    k(f"{Lend}:")
    return k

def k_red_ln2():
    k = K("ln2_kernel")
    k.sgpr = 48
    Lend = k.label("end")
    k("s_cmp_ge_u32 s2, 64")
    k(f"s_cbranch_scc1 {Lend}")
    k(f"s_load_dwordx2 s[4:5], s[0:1], {KA['x']}")
    k(f"s_load_dwordx2 s[8:9], s[0:1], {KA['ws']}")
    k("s_waitcnt lgkmcnt(0)")
    k.srd(12, 4, 5, S*D*2)
    k.srd_off(16, 8, 9, OFF_MOD, 6*576*4)
    k.srd_off(20, 8, 9, OFF_H2, S*D*2)
    k.srd_off(24, 8, 9, OFF_X2, S*D*2)
    k.srd_off(28, 8, 9, OFF_P1, 4*S*D*4)
    k("v_lshrrev_b32 v1, 3, v0")
    k("s_lshl_b32 s32, s2, 5")
    k("v_add_u32 v1, s32, v1")
    k("s_movk_i32 s33, 1152")
    k("v_mul_lo_u32 v4, v1, s33")
    k("v_and_b32 v2, 7, v0")
    k("v_lshl_add_u32 v1, v2, 4, v4")
    k("v_lshlrev_b32 v3, 5, v2")
    k("v_lshl_add_u32 v4, v4, 1, v3")
    XR = 8
    for i in range(9):
        k(f"buffer_load_dwordx4 v[{XR+4*i}:{XR+4*i+3}], v1, s[12:15], 0 offen offset:{i*128}")
    resid(k, XR, 2*576*4)
    for i in range(9):
        k(f"buffer_store_dwordx4 v[{XR+4*i}:{XR+4*i+3}], v1, s[24:27], 0 offen offset:{i*128}")
    ln_core(k, XR, 16, 3*576*4, 4*576*4, "v3", None)
    for i in range(9):
        k(f"buffer_store_dwordx4 v[{XR+4*i}:{XR+4*i+3}], v1, s[20:23], 0 offen offset:{i*128}")
    k(f"{Lend}:")
    return k

def resid(k, XR, gate_off):
    k(f"s_mov_b32 s41, {gate_off}")
    for i in range(9):
        Pb = 100
        for p in range(4):
            k(f"s_mov_b32 s42, {p*S*D*4}")
            for hh in range(2):
                k(f"buffer_load_dwordx4 v[{Pb+p*8+hh*4}:{Pb+p*8+hh*4+3}], v4, s[28:31], s42 offen offset:{i*256+hh*16}")
        for hh in range(2):
            k(f"buffer_load_dwordx4 v[{Pb+32+hh*4}:{Pb+32+hh*4+3}], v3, s[16:19], s41 offen offset:{i*256+hh*16}")
        k("s_waitcnt vmcnt(0)")
        for e in range(8):
            k(f"v_add_f32 v{Pb+e}, v{Pb+e}, v{Pb+8+e}")
            k(f"v_add_f32 v{Pb+16+e}, v{Pb+16+e}, v{Pb+24+e}")
        for e in range(8):
            k(f"v_add_f32 v{Pb+e}, v{Pb+e}, v{Pb+16+e}")
        for e in range(0, 8, 2):
            a, b, t = Pb+e, Pb+e+1, Pb+8
            k(f"v_cvt_pk_bf16_f32 v{t}, v{a}, v{b}")
            k(f"v_lshlrev_b32 v{a}, 16, v{t}"); k(f"v_and_b32 v{b}, 0xffff0000, v{t}")
            k(f"v_mul_f32 v{a}, v{a}, v{Pb+32+e}"); k(f"v_mul_f32 v{b}, v{b}, v{Pb+32+e+1}")
            k(f"v_cvt_pk_bf16_f32 v{t}, v{a}, v{b}")
            k(f"v_lshlrev_b32 v{a}, 16, v{t}"); k(f"v_and_b32 v{b}, 0xffff0000, v{t}")
            x = XR + 4*i + e//2
            k(f"v_lshlrev_b32 v{t}, 16, v{x}"); k(f"v_and_b32 v{t+1}, 0xffff0000, v{x}")
            k(f"v_add_f32 v{a}, v{a}, v{t}"); k(f"v_add_f32 v{b}, v{b}, v{t+1}")
            k(f"v_cvt_pk_bf16_f32 v{x}, v{a}, v{b}")

def k_final():
    k = K("final_kernel")
    k.sgpr = 48; k.vgpr = 144; k.accum = 144
    Lend = k.label("end")
    k("s_cmp_ge_u32 s2, 64")
    k(f"s_cbranch_scc1 {Lend}")
    k(f"s_load_dwordx2 s[4:5], s[0:1], {KA['out']}")
    k(f"s_load_dwordx2 s[8:9], s[0:1], {KA['ws']}")
    k("s_waitcnt lgkmcnt(0)")
    k.srd(20, 4, 5, S*D*2)
    k.srd_off(16, 8, 9, OFF_MOD, 6*576*4)
    k.srd_off(12, 8, 9, OFF_X2, S*D*2)
    k.srd_off(28, 8, 9, OFF_P1, 4*S*D*4)
    k("v_lshrrev_b32 v1, 3, v0")
    k("s_lshl_b32 s32, s2, 5")
    k("v_add_u32 v1, s32, v1")
    k("s_movk_i32 s33, 1152")
    k("v_mul_lo_u32 v4, v1, s33")
    k("v_and_b32 v2, 7, v0")
    k("v_lshl_add_u32 v1, v2, 4, v4")
    k("v_lshlrev_b32 v3, 5, v2")
    k("v_lshl_add_u32 v4, v4, 1, v3")
    XR = 8
    for i in range(9):
        k(f"buffer_load_dwordx4 v[{XR+4*i}:{XR+4*i+3}], v1, s[12:15], 0 offen offset:{i*128}")
    resid(k, XR, 5*576*4)
    for i in range(9):
        k(f"buffer_store_dwordx4 v[{XR+4*i}:{XR+4*i+3}], v1, s[20:23], 0 offen offset:{i*128}")
    k(f"{Lend}:")
    return k
```

```python
MB = 1 << 20
S, D, H, DH, M, SEG, F = 2048, 576, 32, 128, 8, 32, 4608
NSEG = S // SEG
OFF_MOD  = 0
OFF_H1   = 1 * MB
OFF_QKV  = 4 * MB
OFF_KVM  = 56 * MB
OFF_OT   = 66 * MB
OFF_X2   = 84 * MB
OFF_H2   = 88 * MB
OFF_ACT  = 92 * MB
OFF_P1   = 112 * MB
OFF_PART = 136 * MB
PART_BYTES = 64 * 32 * 4608 * 4
OFF_MEM  = OFF_PART + PART_BYTES
FILL_BYTES = 19 * 2 * MB
WS_BYTES = 256 * MB
KA = dict(x=0, mem0=8, Wq=16, Wk=24, Wv=32, Wo=40, seglen=48, Bx=56, wg=64, wu=72, wd=80, c=88, wmod=96, out=104, dbg=112, ws=120)
OFF_DBG = 200 * MB
```

```python
import sys, os
PROF = os.environ.get('PROF') == '1'
sys.path.insert(0, 'work')
from asmlib import build_file
from layout import *
import k_small, k_gemm, k_rec, k_attn
NAME = "adaLN_cond__memory_aug_recurrent_mem_tr__geglu_ffn__prompt"
ref = open(f"cdna_kernels/{NAME}.s.ref").read().split("\n")
hdr = []
for ln in ref:
    if ln.startswith("; @launch") or ln.startswith("; Override") or ln.startswith("; grid=ceil"):
        continue
    if not ln.startswith(";"):
        break
    hdr.append(ln)
header = "\n".join(hdr)
kernels = []; launches = []
def add(k, grid, block, lds):
    if k not in kernels: kernels.append(k)
    launches.append((k.name, grid, block, lds))
add(k_small.k_mod(), (k_small.NMODWG + k_small.NFILLWG,1,1), (256,1,1), 4096)
add(k_small.k_ln1(), (64,1,1), (256,1,1), 0)
g = k_gemm.gemm_kernel('gqkv_kernel', 'qkv'); add(g, (g.nwg,1,1), (256,1,1), g.lds)
add(k_rec.k_rec(prof=PROF), (k_rec.NHEAD_WG + k_rec.NRED_WG,1,1), (256,1,1), k_rec.LDS_BYTES)
a = k_attn.k_attn(); add(a, (512,1,1), (256,1,1), a.lds)
g = k_gemm.gemm_kernel('gwo_kernel', 'wo'); add(g, (g.nwg,1,1), (256,1,1), g.lds)
add(k_small.k_red_ln2(), (64,1,1), (256,1,1), 0)
g = k_gemm.gemm_kernel('gup_kernel', 'up'); add(g, (g.nwg,1,1), (256,1,1), g.lds)
g = k_gemm.gemm_kernel('gdown_kernel', 'down'); add(g, (g.nwg,1,1), (256,1,1), g.lds)
add(k_small.k_final(), (64,1,1), (256,1,1), 0)
open(f"cdna_kernels/{NAME}.s", "w").write(build_file(header, launches, kernels))
print("written", len(launches), "launches")
```

```python
from asmlib import K
from layout import *

def k_attn(k=None, sc=""):
    embedded = k is not None
    if not embedded:
        k = K("attn_kernel")
        k.vgpr = 168; k.accum = 168; k.sgpr = 64
        k.lds = 4 * 10240
        Lend = k.label("end")
        k("s_cmp_ge_u32 s2, 512")
        k(f"s_cbranch_scc1 {Lend}")
    k(f"s_load_dwordx2 s[12:13], s[0:1], {KA['ws']}")
    k("v_and_b32 v1, 63, v0")
    k("v_lshrrev_b32 v2, 6, v0")
    k("s_nop 0")
    k("v_readfirstlane_b32 s14, v2")
    k("v_lshrrev_b32 v3, 4, v1")
    k("v_and_b32 v4, 15, v1")
    k("s_lshr_b32 s15, s2, 3")
    k("s_and_b32 s16, s2, 7")
    k("s_lshl_b32 s16, s16, 2")
    k("s_add_u32 s16, s16, s14")
    k("s_lshl_b32 s17, s16, 8")
    k("s_waitcnt lgkmcnt(0)")
    k.srd_off(24, 12, 13, OFF_QKV, S*12288*2)
    k.srd_off(28, 12, 13, OFF_KVM, 64*8*16384)
    k.srd_off(32, 12, 13, OFF_OT, S*4096*2)
    k(f"s_mul_i32 s18, s15, {32*24576}")
    k("s_add_u32 s18, s18, s17")
    k("s_lshl_b32 s19, s15, 17")
    k("s_add_u32 s19, s19, s17")
    k("s_mul_i32 s20, s14, 10240")
    k("s_movk_i32 s21, 24576")
    k("v_mul_lo_u32 v5, v4, s21")
    k("v_lshl_add_u32 v5, v3, 4, v5")
    k("v_and_b32 v6, 7, v1")
    k("v_lshlrev_b32 v6, 14, v6")
    k("v_lshl_add_u32 v6, v3, 4, v6")
    for par in range(2):
        k("v_lshrrev_b32 v7, 1, v4")
        k(f"v_or_b32 v8, {4*par}, v3")
        k("v_xor_b32 v7, v7, v8")
        k("v_lshlrev_b32 v7, 1, v7")
        k("v_and_b32 v8, 1, v1")
        k("v_or_b32 v7, v7, v8")
        k("v_mul_lo_u32 v8, v3, s21")
        k(f"v_lshl_add_u32 v{9+par}, v7, 4, v8")
        k("v_lshlrev_b32 v8, 14, v3")
        k(f"v_lshl_add_u32 v{11+par}, v7, 4, v8")
    for i in range(8):
        k(f"s_add_u32 s22, s18, {16384 + i*4*24576}")
        k(f"s_add_u32 m0, s20, {i*1024}")
        k("s_nop 0")
        k(f"buffer_load_dwordx4 v{9+(i&1)}, s[24:27], s22 offen lds")
    for i in range(2):
        k(f"s_add_u32 s22, s19, {8192 + i*4*16384}")
        k(f"s_add_u32 m0, s20, {(8+i)*1024}")
        k("s_nop 0")
        k(f"buffer_load_dwordx4 v{11+i}, s[28:31], s22 offen lds")
    for qt in range(2):
        k(f"s_add_u32 s22, s18, {qt*16*24576}")
        for ks in range(4):
            r = 16 + (qt*4+ks)*4
            k(f"buffer_load_dwordx4 v[{r}:{r+3}], v5, s[24:27], s22 offen offset:{ks*64}")
    for ks in range(4):
        k(f"buffer_load_dwordx4 v[{48+4*ks}:{51+4*ks}], v6, s[28:31], s19 offen offset:{ks*64}")
    for t in range(2):
        k(f"s_add_u32 s22, s18, {8192 + t*16*24576}")
        for ks in range(4):
            r = 64 + (t*4+ks)*4
            k(f"buffer_load_dwordx4 v[{r}:{r+3}], v5, s[24:27], s22 offen offset:{ks*64}")
    for i in range(24): k(f"v_mov_b32 v{96+i}, 0")
    for r in range(4):
        k(f"v_lshl_add_u32 v7, v3, 2, {r}")
        k(f"v_cmp_gt_u32 s[{40+2*r}:{41+2*r}], v7, v4")
    k("v_cmp_lt_u32 s[48:49], 31, v1")
    k("v_lshrrev_b32 v7, 2, v4")
    k("v_lshl_add_u32 v7, v3, 2, v7")
    k("v_and_b32 v8, 7, v7")
    k("v_lshlrev_b32 v13, 8, v7")
    k("v_lshl_add_u32 v13, v8, 5, v13")
    k("v_and_b32 v14, 3, v1")
    k("v_lshl_add_u32 v13, v14, 3, v13")
    k("v_add_u32 v13, s20, v13")
    k("v_lshlrev_b32 v15, 8, v8")
    k("v_lshl_add_u32 v15, v8, 5, v15")
    k("v_lshl_add_u32 v15, v14, 3, v15")
    k("s_add_u32 s22, s20, 8192")
    k("v_add_u32 v15, s22, v15")
    k("s_mov_b32 s44+8, 0" if False else "s_mov_b32 s52, 0x3db504f3")
    k("s_mov_b32 s53, 0x3fb8aa3b")
    k("s_waitcnt vmcnt(0)")
    for qt in range(2):
        for t in range(3):
            if qt == 0 and t == 2: continue
            a = 96 + (qt*3+t)*4
            for ks in range(4):
                kr = 48 + (t*4+ks)*4; qr = 16 + (qt*4+ks)*4
                k(f"v_mfma_f32_16x16x32_bf16 v[{a}:{a+3}], v[{kr}:{kr+3}], v[{qr}:{qr+3}], v[{a}:{a+3}]")
    for et in range(8):
        k(f"v_xor_b32 v120, {et*32}, v13")
        k(f"v_xor_b32 v121, {et*32}, v15")
        k(f"ds_read_b64_tr_b16 v[{16+8*et}:{17+8*et}], v120")
        k(f"ds_read_b64_tr_b16 v[{18+8*et}:{19+8*et}], v120 offset:4096")
        k(f"ds_read_b64_tr_b16 v[{20+8*et}:{21+8*et}], v121")
    k("v_mov_b32 v124, 0xff800000")
    def xred(op, r, t):
        k(f"v_mov_b32 v{t}, v{r}")
        k("s_nop 1")
        k(f"v_permlane32_swap_b32 v{r}, v{t}")
        k(f"{op} v{r}, v{r}, v{t}")
        k(f"v_mov_b32 v{t}, v{r}")
        k("s_nop 1")
        k(f"v_permlane16_swap_b32 v{r}, v{t}")
        k(f"{op} v{r}, v{r}, v{t}")
    P = {0: 128, 1: 136}
    for qt in range(2):
        b = 96 + qt*12
        T = 144
        for i in range(0, 12, 2): k(f"v_cvt_pk_bf16_f32 v{T+(i>>1)}, v{b+i}, v{b+i+1}")
        for i in range(0, 12, 2):
            k(f"v_lshlrev_b32 v{b+i}, 16, v{T+(i>>1)}"); k(f"v_and_b32 v{b+i+1}, 0xffff0000, v{T+(i>>1)}")
        for i in range(12): k(f"v_mul_f32 v{b+i}, s52, v{b+i}")
        for i in range(0, 12, 2): k(f"v_cvt_pk_bf16_f32 v{T+(i>>1)}, v{b+i}, v{b+i+1}")
        for i in range(0, 12, 2):
            k(f"v_lshlrev_b32 v{b+i}, 16, v{T+(i>>1)}"); k(f"v_and_b32 v{b+i+1}, 0xffff0000, v{T+(i>>1)}")
        for r in range(4):
            k(f"v_cndmask_b32 v{b+r}, v{b+r}, v124, s[48:49]")
        tri = 1 + qt
        for r in range(4):
            k(f"v_cndmask_b32 v{b+4*tri+r}, v{b+4*tri+r}, v124, s[{40+2*r}:{41+2*r}]")
        if qt == 0:
            for r in range(4): k(f"v_mov_b32 v{b+8+r}, v124")
        k(f"v_max3_f32 v{T}, v{b}, v{b+1}, v{b+2}")
        k(f"v_max3_f32 v{T+1}, v{b+3}, v{b+4}, v{b+5}")
        k(f"v_max3_f32 v{T+2}, v{b+6}, v{b+7}, v{b+8}")
        k(f"v_max3_f32 v{T+3}, v{b+9}, v{b+10}, v{b+11}")
        k(f"v_max3_f32 v{T}, v{T}, v{T+1}, v{T+2}")
        k(f"v_max_f32 v{T}, v{T}, v{T+3}")
        xred("v_max_f32", T, T+1)
        k(f"v_mul_f32 v{T}, s53, v{T}")
        for i in range(12): k(f"v_fma_f32 v{b+i}, v{b+i}, s53, -v{T}")
        for i in range(12): k(f"v_exp_f32 v{b+i}, v{b+i}")
        k("s_nop 0")
        for i in range(6): k(f"v_add_f32 v{T+i}, v{b+2*i}, v{b+2*i+1}")
        k(f"v_add_f32 v{T}, v{T}, v{T+1}"); k(f"v_add_f32 v{T+2}, v{T+2}, v{T+3}"); k(f"v_add_f32 v{T+4}, v{T+4}, v{T+5}")
        k(f"v_add_f32 v{T}, v{T}, v{T+2}"); k(f"v_add_f32 v{T}, v{T}, v{T+4}")
        xred("v_add_f32", T, T+1)
        k(f"v_rcp_f32 v{T+1}, v{T}")
        k("s_nop 0")
        for i in range(12): k(f"v_mul_f32 v{b+i}, v{b+i}, v{T+1}")
        p = P[qt]
        k(f"v_cvt_pk_bf16_f32 v{p+4}, v{b}, v{b+1}"); k(f"v_cvt_pk_bf16_f32 v{p+5}, v{b+2}, v{b+3}")
        k(f"v_cvt_pk_bf16_f32 v{p}, v{b+4}, v{b+5}"); k(f"v_cvt_pk_bf16_f32 v{p+1}, v{b+6}, v{b+7}")
        k(f"v_cvt_pk_bf16_f32 v{p+2}, v{b+8}, v{b+9}"); k(f"v_cvt_pk_bf16_f32 v{p+3}, v{b+10}, v{b+11}")
    k("v_lshlrev_b32 v5, 13, v4")
    k("v_lshl_add_u32 v5, v3, 3, v5")
    k("s_lshl_b32 s22, s15, 18")
    k("s_add_u32 s22, s22, s17")
    k("s_waitcnt lgkmcnt(0)")
    for qt in range(2):
        p = P[qt]
        A = 80
        for i in range(32): k(f"v_mov_b32 v{A+i}, 0")
        k("s_nop 1")
        for et in range(8):
            a = A + 4*et
            k(f"v_mfma_f32_16x16x32_bf16 v[{a}:{a+3}], v[{16+8*et}:{19+8*et}], v[{p}:{p+3}], v[{a}:{a+3}]")
        for et in range(8):
            a = A + 4*et
            k(f"v_mfma_f32_16x16x16_bf16 v[{a}:{a+3}], v[{20+8*et}:{21+8*et}], v[{p+4}:{p+5}], v[{a}:{a+3}]")
        k("s_nop 7")
        k(f"s_add_u32 s23, s22, {qt*16*8192}")
        for et in range(8):
            a = A + 4*et
            k(f"v_cvt_pk_bf16_f32 v{150+2*et}, v{a}, v{a+1}")
            k(f"v_cvt_pk_bf16_f32 v{151+2*et}, v{a+2}, v{a+3}")
            k(f"buffer_store_dwordx2 v[{150+2*et}:{151+2*et}], v5, s[32:35], s23 offen offset:{et*32}{sc}")
    if not embedded: k(f"{Lend}:")
    return k
```

```python
from asmlib import K
from layout import *


def gemm_kernel(name, kind, k=None, sc=""):
    embedded = k is not None
    if not embedded: k = K(name)
    mode = 'a' if kind in ('qkv', 'up') else 'b'
    if kind == 'qkv':
        NB, NKS, NST, lda, ldw = 48, 1, 9, 1152, 8192
    elif kind == 'up':
        NB, NKS, NST, lda, ldw = 36, 1, 9, 1152, 9216
    elif kind == 'wo':
        NB, NKS, NST, lda, ldw = 4, 4, 16, 8192, 1152
    elif kind == 'down':
        NB, NKS, NST, lda, ldw = 4, 4, 18, 9216, 1152
    NWG = 16 * NB * NKS
    TM, TN = (4, 8) if mode == 'a' else (2, 9)
    WBYTES = 32768 if mode == 'a' else 18432
    STG = 16384 + WBYTES
    if not embedded:
        k.lds = 3 * STG
        k.nwg = NWG
        k.vgpr = 256 + 128; k.accum = 256; k.sgpr = 64
        Lend = k.label("end")
        k(f"s_cmp_ge_u32 s2, {NWG}")
        k(f"s_cbranch_scc1 {Lend}")
    k(f"s_load_dwordx2 s[8:9], s[0:1], {KA['ws']}")
    if kind == 'qkv':
        k(f"s_load_dwordx4 s[4:7], s[0:1], {KA['Wq']}")
        k(f"s_load_dwordx2 s[10:11], s[0:1], {KA['Wv']}")
    elif kind == 'up':
        k(f"s_load_dwordx4 s[4:7], s[0:1], {KA['wg']}")
    elif kind == 'wo':
        k(f"s_load_dwordx2 s[4:5], s[0:1], {KA['Wo']}")
    elif kind == 'down':
        k(f"s_load_dwordx2 s[4:5], s[0:1], {KA['wd']}")
    magic = (1 << 32) // NB + 1
    k(f"s_mov_b32 s43, {magic}")
    k("s_mul_hi_u32 s45, s2, s43")
    k(f"s_mul_i32 s44, s45, {NB}")
    k("s_sub_u32 s44, s2, s44")
    if NKS > 1:
        k(f"s_and_b32 s46, s45, {NKS-1}")
        k(f"s_lshr_b32 s45, s45, {NKS.bit_length()-1}")
    else:
        k("s_mov_b32 s46, 0")
    k("s_waitcnt lgkmcnt(0)")
    if kind == 'qkv':
        k.srd_off(12, 8, 9, OFF_H1, S*D*2)
        k("s_lshr_b32 s47, s44, 4")
        k("s_cmp_eq_u32 s47, 1")
        k("s_cselect_b32 s4, s6, s4"); k("s_cselect_b32 s5, s7, s5")
        k("s_cmp_eq_u32 s47, 2")
        k("s_cselect_b32 s4, s10, s4"); k("s_cselect_b32 s5, s11, s5")
        k.srd(16, 4, 5, 576*4096*2)
        k.srd(20, 4, 5, 576*4096*2)
        k.srd_off(24, 8, 9, OFF_QKV, S*12288*2)
        k("s_and_b32 s48, s44, 15"); k("s_lshl_b32 s48, s48, 9")
        k("s_add_u32 s49, s48, 256")
        k("s_lshl_b32 s50, s44, 9")
    elif kind == 'up':
        k.srd_off(12, 8, 9, OFF_H2, S*D*2)
        k.srd(16, 4, 5, 576*F*2)
        k.srd(20, 6, 7, 576*F*2)
        k.srd_off(24, 8, 9, OFF_ACT, S*F*2)
        k("s_lshl_b32 s48, s44, 8"); k("s_mov_b32 s49, s48"); k("s_mov_b32 s50, s48")
    else:
        k.srd_off(12, 8, 9, OFF_OT if kind == 'wo' else OFF_ACT, S*(4096 if kind == 'wo' else F)*2)
        k.srd(16, 4, 5, (4096 if kind == 'wo' else F)*576*2)
        k.srd_off(24, 8, 9, OFF_P1 if kind == 'wo' else OFF_P2, 4*S*D*4)
        k("s_mul_i32 s48, s44, 288")
        k("s_mul_i32 s50, s44, 576")
    k(f"s_mul_i32 s51, s46, {NST*64*2}")
    k(f"s_mul_i32 s52, s46, {NST*64*ldw}")
    k(f"s_mul_i32 s53, s45, {128*lda}")
    k("s_add_u32 s53, s53, s51")
    k("s_add_u32 s48, s48, s52")
    if mode == 'a':
        k("s_add_u32 s49, s49, s52")
    k("v_and_b32 v1, 63, v0")
    k("v_lshrrev_b32 v2, 6, v0")
    k("s_nop 0")
    k("v_readfirstlane_b32 s54, v2")
    k("v_lshrrev_b32 v3, 4, v1")
    k("v_and_b32 v4, 15, v1")
    k("v_lshrrev_b32 v5, 3, v1")
    k(f"s_movk_i32 s55, {lda}") if lda < 32768 else k(f"s_mov_b32 s55, {lda}")
    k("v_mul_lo_u32 v5, v5, s55")
    k("v_and_b32 v6, 7, v1")
    for par in range(2):
        k(f"v_add_u32 v7, {4*par}, v3")
        k("v_and_b32 v7, 7, v7")
        k("v_xor_b32 v7, v7, v6")
        k(f"v_lshl_add_u32 v{8+par}, v7, 4, v5")
    k(f"s_mul_i32 s56, s54, {32*lda}")
    k("s_add_u32 s53, s53, s56")
    k(f"s_mov_b32 s57, {ldw}")
    if mode == 'a':
        k("v_mul_lo_u32 v5, v3, s57")
        k("v_lshrrev_b32 v6, 1, v4")
        for var in range(2):
            k(f"v_or_b32 v7, {var<<2}, v3")
            k("v_xor_b32 v7, v7, v6")
            k("v_lshlrev_b32 v7, 1, v7")
            k("v_and_b32 v12, 1, v1")
            k("v_or_b32 v7, v7, v12")
            k(f"v_lshl_add_u32 v{10+var}, v7, 4, v5")
        k("s_lshr_b32 s58, s54, 1")
        k("s_and_b32 s59, s54, 1")
        k("s_cmp_eq_u32 s58, 1")
        k("s_cselect_b32 s28, s20, s16"); k("s_cselect_b32 s29, s21, s17")
        k("s_mov_b32 s30, s18"); k("s_mov_b32 s31, s19")
        k("s_cselect_b32 s60, s49, s48")
        k(f"s_mul_i32 s61, s59, {32*ldw}")
        k("s_add_u32 s60, s60, s61")
        k("s_lshl_b32 s61, s58, 14"); k("s_lshl_b32 s62, s59, 13")
        k("s_add_u32 s61, s61, s62"); k("s_add_u32 s61, s61, 16384")
        NWD = 8
    else:
        k("s_mov_b32 s62, 0xe38f")
        for j in range(5):
            if j < 4:
                k(f"s_add_u32 s58, s54, {4*j}")
            else:
                k("s_and_b32 s58, s54, 1"); k("s_add_u32 s58, s58, 16")
            k("s_lshl_b32 s58, s58, 6")
            k("v_add_u32 v5, s58, v1")
            k("v_mul_lo_u32 v6, v5, s62")
            k("v_lshrrev_b32 v6, 20, v6")
            k("v_mul_u32_u24 v7, 18, v6")
            k("v_sub_u32 v7, v5, v7")
            k("v_mul_lo_u32 v6, v6, s57")
            k(f"v_lshl_add_u32 v{10+j}, v7, 4, v6")
        k("s_mov_b32 s28, s16"); k("s_mov_b32 s29, s17"); k("s_mov_b32 s30, s18"); k("s_mov_b32 s31, s19")
        k("s_mov_b32 s60, s48")
        NWD = 5
    k("s_lshl_b32 s62, s54, 12")
    NDMA = 4 + NWD
    def dma_stage(st):
        buf = (st % 3) * STG
        out = []
        for i in range(4):
            out.append(f"s_add_u32 s63, s53, {st*128 + i*8*lda}\ns_add_u32 m0, s62, {buf + i*1024}\ns_nop 0\nbuffer_load_dwordx4 v{8+(i&1)}, s[12:15], s63 offen lds")
        if mode == 'a':
            for i in range(8):
                out.append(f"s_add_u32 s63, s60, {(st*64 + i*4)*ldw}\ns_add_u32 m0, s61, {buf + i*1024}\ns_nop 0\nbuffer_load_dwordx4 v{10+((i>>1)&1)}, s[28:31], s63 offen lds")
        else:
            for j in range(5):
                if j < 4:
                    out.append(f"s_add_u32 s63, s60, {st*64*ldw}\ns_lshl_b32 m0, s54, 10\ns_add_u32 m0, m0, {buf + 16384 + j*4096}\ns_nop 0\nbuffer_load_dwordx4 v{10+j}, s[28:31], s63 offen lds")
                else:
                    out.append(f"s_add_u32 s63, s60, {st*64*ldw}\ns_and_b32 m0, s54, 1\ns_lshl_b32 m0, m0, 10\ns_add_u32 m0, m0, {buf + 16384 + 16*1024}\ns_nop 0\nbuffer_load_dwordx4 v{10+j}, s[28:31], s63 offen lds")
        return out
    AB = 16
    WB = 32
    k("v_lshrrev_b32 v5, 1, v4")
    if mode == 'a':
        k("s_lshr_b32 s58, s54, 1")
        k("s_mul_i32 s58, s58, 8192")
        k("v_lshl_add_u32 v6, v4, 7, s58")
        for kk in range(2):
            k(f"v_add_u32 v7, {4*kk}, v3")
            k("v_xor_b32 v7, v7, v5")
            k("v_lshl_add_u32 v7, v7, 4, v6")
            for b in range(3):
                k(f"v_add_u32 v{AB + b*2 + kk}, {b*STG}, v7")
        k("v_lshrrev_b32 v5, 2, v4")
        k("v_lshl_add_u32 v6, v3, 3, v5")
        k("v_lshlrev_b32 v6, 8, v6")
        k("v_and_b32 v7, 3, v1")
        k("v_lshl_add_u32 v6, v7, 3, v6")
        k("v_and_b32 v7, 1, v3")
        k("v_lshl_or_b32 v5, v7, 2, v5")
        k("s_and_b32 s58, s54, 1")
        if kind == 'qkv':
            k("s_lshl_b32 s58, s58, 14")
            k("s_add_u32 s58, s58, 16384")
            k("v_add_u32 v6, s58, v6")
            for t in range(8):
                k(f"v_xor_b32 v7, {t}, v5")
                k("v_lshl_add_u32 v7, v7, 5, v6")
                for b in range(3):
                    k(f"v_add_u32 v{WB + b*8 + t}, {b*STG}, v7")
        else:
            k("s_lshl_b32 s58, s58, 2")
            k("v_add_u32 v6, 16384, v6")
            for t in range(4):
                k(f"v_add_u32 v7, {t}, s58") if False else None
                k(f"s_add_u32 s59, s58, {t}")
                k("v_xor_b32 v7, s59, v5")
                k("v_lshl_add_u32 v7, v7, 5, v6")
                for b in range(3):
                    k(f"v_add_u32 v{WB + b*8 + t}, {b*STG}, v7")
                    k(f"v_add_u32 v{WB + b*8 + 4 + t}, {b*STG + 16384}, v7")
    else:
        k("s_mul_i32 s58, s54, 4096")
        k("v_lshl_add_u32 v6, v4, 7, s58")
        k("v_and_b32 v7, 1, v3")
        k("v_lshl_add_u32 v6, v7, 3, v6")
        k("v_lshrrev_b32 v7, 1, v3")
        k("v_xor_b32 v5, v7, v5")
        for q in range(4):
            k(f"v_xor_b32 v7, {2*q}, v5")
            k("v_lshl_add_u32 v7, v7, 4, v6")
            for b in range(3):
                k(f"v_add_u32 v{AB + b*4 + q}, {b*STG}, v7")
        k("v_lshrrev_b32 v5, 2, v4")
        k("v_lshl_add_u32 v5, v3, 2, v5")
        k("v_mul_u32_u24 v5, 288, v5")
        k("v_and_b32 v7, 3, v1")
        k("v_lshl_add_u32 v5, v7, 3, v5")
        for b in range(3):
            k(f"v_add_u32 v{WB + b}, {b*STG + 16384}, v5")
    FR = 64
    FSZ = (TM + TN) * 4
    def fa(s, mt): return FR + s*FSZ + mt*4
    def fw(s, t): return FR + s*FSZ + TM*4 + t*4
    def reads(st, kk, s):
        b = st % 3
        out = []
        for mt in range(TM):
            r = fa(s, mt)
            if mode == 'a':
                out.append(f"ds_read_b128 v[{r}:{r+3}], v{AB + b*2 + kk} offset:{mt*2048}")
            else:
                out.append(f"ds_read_b64 v[{r}:{r+1}], v{AB + b*4 + 2*kk} offset:{mt*2048}")
                out.append(f"ds_read_b64 v[{r+2}:{r+3}], v{AB + b*4 + 2*kk+1} offset:{mt*2048}")
        for t in range(TN):
            r = fw(s, t)
            if mode == 'a':
                out.append(f"ds_read_b64_tr_b16 v[{r}:{r+1}], v{WB + b*8 + t} offset:{kk*8192}")
                out.append(f"ds_read_b64_tr_b16 v[{r+2}:{r+3}], v{WB + b*8 + t} offset:{kk*8192 + 1024}")
            else:
                out.append(f"ds_read_b64_tr_b16 v[{r}:{r+1}], v{WB + b} offset:{kk*32*288 + t*32}")
                out.append(f"ds_read_b64_tr_b16 v[{r+2}:{r+3}], v{WB + b} offset:{kk*32*288 + 16*288 + t*32}")
        return out
    def acc(t, mt): return (t*TM + mt) * 4
    def mfmas(s):
        out = []
        for t in range(TN):
            for mt in range(TM):
                a = acc(t, mt)
                out.append(f"v_mfma_f32_16x16x32_bf16 a[{a}:{a+3}], v[{fw(s,t)}:{fw(s,t)+3}], v[{fa(s,mt)}:{fa(s,mt)+3}], a[{a}:{a+3}]")
        return out
    def interleave(mf, others):
        n = len(mf); m = len(others); j = 0
        for i, x in enumerate(mf):
            k(x)
            tgt = (i + 1) * m // n
            while j < tgt:
                k(others[j]); j += 1
    for i in range(TM*TN*4):
        k(f"v_accvgpr_write_b32 a{i}, 0")
    for st in range(min(3, NST)):
        for x in dma_stage(st): k(x)
    k(f"s_waitcnt vmcnt({2*NDMA})")
    k("s_barrier")
    for x in reads(0, 0, 0): k(x)
    for st in range(NST):
        k("s_waitcnt lgkmcnt(0)")
        interleave(mfmas(0), reads(st, 1, 1))
        k("s_waitcnt lgkmcnt(0)")
        oth = []
        if st + 1 < NST:
            k(f"s_waitcnt vmcnt({NDMA if st + 2 < NST else 0})")
            k("s_barrier")
            oth = reads(st+1, 0, 0)
            if st + 3 < NST:
                oth = dma_stage(st+3) + oth
        interleave(mfmas(1), oth)
    k("s_nop 7"); k("s_nop 7")
    if mode == 'a':
        k("s_lshr_b32 s58, s54, 1"); k("s_lshl_b32 s58, s58, 6")
    else:
        k("s_lshl_b32 s58, s54, 5")
    k("s_lshl_b32 s59, s45, 7"); k("s_add_u32 s58, s58, s59")
    k("v_add_u32 v5, s58, v4")
    E = 64
    if kind == 'qkv':
        k("s_movk_i32 s59, 24576")
        k("v_mul_lo_u32 v5, v5, s59")
        k("v_lshl_add_u32 v5, v3, 3, v5")
        k("s_and_b32 s58, s54, 1"); k("s_lshl_b32 s58, s58, 8"); k("s_add_u32 s50, s50, s58")
        for mt in range(TM):
            k(f"s_add_u32 s58, s50, {mt*16*24576}")
            for t in range(TN):
                a = acc(t, mt); e = E + ((t*TM+mt) % 8) * 8
                for r in range(4): k(f"v_accvgpr_read_b32 v{e+r}, a{a+r}")
                k(f"v_cvt_pk_bf16_f32 v{e+4}, v{e}, v{e+1}")
                k(f"v_cvt_pk_bf16_f32 v{e+5}, v{e+2}, v{e+3}")
                k(f"buffer_store_dwordx2 v[{e+4}:{e+5}], v5, s[24:27], s58 offen offset:{t*32}{sc}")
    elif kind == 'up':
        k("s_movk_i32 s59, 9216")
        k("v_mul_lo_u32 v5, v5, s59")
        k("v_lshl_add_u32 v5, v3, 3, v5")
        k("s_and_b32 s58, s54, 1"); k("s_lshl_b32 s58, s58, 7"); k("s_add_u32 s50, s50, s58")
        k("s_mov_b32 s40, 0x3d372713")
        k("s_mov_b32 s41, 0xc0135761")
        for mt in range(TM):
            k(f"s_add_u32 s58, s50, {mt*16*9216}")
            for t in range(4):
                ag = acc(t, mt); au = acc(t+4, mt); e = E + ((t*TM+mt) % 4) * 24
                for r in range(4): k(f"v_accvgpr_read_b32 v{e+r}, a{ag+r}")
                for r in range(4): k(f"v_accvgpr_read_b32 v{e+4+r}, a{au+r}")
                k(f"v_cvt_pk_bf16_f32 v{e+8}, v{e}, v{e+1}")
                k(f"v_cvt_pk_bf16_f32 v{e+9}, v{e+2}, v{e+3}")
                k(f"v_cvt_pk_bf16_f32 v{e+10}, v{e+4}, v{e+5}")
                k(f"v_cvt_pk_bf16_f32 v{e+11}, v{e+6}, v{e+7}")
                for r in range(4):
                    src = e+8+(r>>1); us = e+10+(r>>1)
                    if r & 1:
                        k(f"v_and_b32 v{e+r}, 0xffff0000, v{src}"); k(f"v_and_b32 v{e+4+r}, 0xffff0000, v{us}")
                    else:
                        k(f"v_lshlrev_b32 v{e+r}, 16, v{src}"); k(f"v_lshlrev_b32 v{e+4+r}, 16, v{us}")
                for r in range(4):
                    x = e+r; y = e+12+r
                    k(f"v_mul_f32 v{y}, v{x}, v{x}")
                    k(f"v_mul_f32 v{y}, v{y}, v{x}")
                    k(f"v_fma_f32 v{y}, v{y}, s40, v{x}")
                    k(f"v_mul_f32 v{y}, s41, v{y}")
                    k(f"v_exp_f32 v{y}, v{y}")
                for r in range(4):
                    y = e+12+r
                    k(f"v_add_f32 v{y}, 1.0, v{y}")
                for r in range(4):
                    y = e+12+r
                    k(f"v_rcp_f32 v{y}, v{y}")
                k("s_nop 0")
                for r in range(4):
                    k(f"v_mul_f32 v{e+r}, v{e+r}, v{e+12+r}")
                k(f"v_cvt_pk_bf16_f32 v{e+8}, v{e}, v{e+1}")
                k(f"v_cvt_pk_bf16_f32 v{e+9}, v{e+2}, v{e+3}")
                k(f"v_lshlrev_b32 v{e}, 16, v{e+8}"); k(f"v_and_b32 v{e+1}, 0xffff0000, v{e+8}")
                k(f"v_lshlrev_b32 v{e+2}, 16, v{e+9}"); k(f"v_and_b32 v{e+3}, 0xffff0000, v{e+9}")
                for r in range(4):
                    k(f"v_mul_f32 v{e+r}, v{e+r}, v{e+4+r}")
                k(f"v_cvt_pk_bf16_f32 v{e+16}, v{e}, v{e+1}")
                k(f"v_cvt_pk_bf16_f32 v{e+17}, v{e+2}, v{e+3}")
                k(f"buffer_store_dwordx2 v[{e+16}:{e+17}], v5, s[24:27], s58 offen offset:{t*32}{sc}")
    else:
        k("s_movk_i32 s59, 2304")
        k("v_mul_lo_u32 v5, v5, s59")
        k("v_lshl_add_u32 v5, v3, 4, v5")
        k(f"s_mul_i32 s58, s46, {S*D*4}"); k("s_add_u32 s50, s50, s58")
        for mt in range(TM):
            k(f"s_add_u32 s58, s50, {mt*16*2304}")
            for t in range(TN):
                a = acc(t, mt); e = E + ((t*TM+mt) % 8) * 4
                for r in range(4): k(f"v_accvgpr_read_b32 v{e+r}, a{a+r}")
                k(f"buffer_store_dwordx4 v[{e}:{e+3}], v5, s[24:27], s58 offen offset:{t*64}{sc}")
    if not embedded: k(f"{Lend}:")
    return k
```

```python
from asmlib import K
from layout import *
import k_gemm, k_attn, k_small
import k_rec3 as k_rec2
import os

BC = 163824
WB = os.environ.get("WB", "1") == "1"
SC = "" if WB else " sc1"
NWG = 256
NWORK = int(os.environ.get('NWORK', '188'))
ST_KV, ST_Q, ST_KVM, ST_ATT, ST_WO, ST_LN2, ST_UP, ST_DOWN = range(8)
DEP_LIMIT = 2000000

def k_mega(prof=False):
    k = K("mega_kernel")
    k.vgpr = 512; k.accum = 256; k.sgpr = 102
    Lend = k.label("end"); Lloop = k.label("loop"); Lrec = k.label("rec")
    k(f"s_cmp_ge_u32 s2, {NWG}")
    k(f"s_cbranch_scc1 {Lend}")
    k(f"s_load_dwordx4 s[4:7], s[0:1], {KA['Wq']}")
    k(f"s_load_dwordx4 s[8:11], s[0:1], {KA['Wv']}")
    k(f"s_load_dwordx2 s[12:13], s[0:1], {KA['ws']}")
    k(f"s_load_dwordx2 s[90:91], s[0:1], {KA['dbg']}")
    k("v_and_b32 v1, 63, v0")
    k("v_lshrrev_b32 v2, 6, v0")
    k("s_nop 0")
    k("v_readfirstlane_b32 s14, v2")
    k("s_waitcnt lgkmcnt(0)")
    k.srd(96, 90, 91, 256)
    k.srd_off(72, 12, 13, OFF_CNT, NCNT*64) if False else None
    def fetch(off, dst, load_only=False):
        Lw = k.label("w")
        k("s_barrier")
        k("s_cmp_lg_u32 s93, 0")
        k(f"s_cbranch_scc1 {Lw}")
        k("s_mov_b64 exec, 1")
        k("v_mov_b32 v2, 1")
        if load_only: k(f"buffer_load_dword v2, off, s[96:99], 0 offset:{off} sc1")
        else: k(f"buffer_atomic_add v2, off, s[96:99], 0 offset:{off} sc0 sc1")
        k(f"v_mov_b32 v3, {BC}")
        k("s_waitcnt vmcnt(0)")
        k("ds_write_b32 v3, v2")
        k("s_waitcnt lgkmcnt(0)")
        k("s_mov_b64 exec, -1")
        k(f"{Lw}:")
        k("s_barrier")
        k(f"v_mov_b32 v3, {BC}")
        k("ds_read_b32 v2, v3")
        k("s_waitcnt lgkmcnt(0)")
        k(f"v_readfirstlane_b32 {dst}, v2")
    k("s_mov_b32 s93, s14")
    k("s_mov_b32 s101, 0")
    k("s_getreg_b32 s40, hwreg(HW_REG_XCC_ID)")
    k("s_and_b32 s40, s40, 15")
    k(f"s_cmp_lg_u32 s40, {int(os.environ.get('XSEL', '0'))}")
    k(f"s_cbranch_scc1 {Lloop}")
    k(f"{Lrec}:")
    fetch(0, "s94")
    k("s_nop 3")
    k(f"s_cmp_ge_u32 s94, {k_rec2.NHEAD_WG}")
    k(f"s_cbranch_scc1 {Lloop}")
    k(f"s_load_dwordx4 s[4:7], s[0:1], {KA['Wq']}")
    k(f"s_load_dwordx4 s[8:11], s[0:1], {KA['Wv']}")
    k(f"s_load_dwordx2 s[12:13], s[0:1], {KA['ws']}")
    k("v_and_b32 v1, 63, v0")
    k("s_mov_b32 s14, s93")
    k("s_waitcnt lgkmcnt(0)")
    def kv_wait(seg_sreg):
        Ls = k.label("kvs"); Lp = k.label("kvp")
        k(f"s_and_b32 s34, {seg_sreg}, 3")
        k("s_cmp_lg_u32 s34, 0")
        k(f"s_cbranch_scc1 {Ls}")
        k(f"s_cmp_ge_u32 {seg_sreg}, 64")
        k(f"s_cbranch_scc1 {Ls}")
        k.srd_off(100-8, 12, 13, OFF_CNT, NCNT*64)
        k(f"{Ls}:")
    k_rec2.rec_body(k, Lend, 64, prof, role_sreg="s94", mega=True)
    bodies = {}
    def body(name, fn):
        L = k.label("b" + name); bodies[name] = L
        k(f"{L}:")
        fn()
        k(f"s_branch {k.Lsig}")
    k.Lsig = k.label("sig")
    body("qkv", lambda: k_gemm.gemm_kernel(None, 'qkv', k=k, sc=SC))
    body("up", lambda: k_gemm.gemm_kernel(None, 'up', k=k, sc=SC))
    k(f"{k.Lsig}:")
    k("s_waitcnt vmcnt(0)")
    k("s_barrier")
    Lns = k.label("ns")
    k("s_cmp_lg_u32 s93, 0")
    k(f"s_cbranch_scc1 {Lns}")
    if prof:
        k("s_memrealtime s[70:71]")
        k(f"s_load_dwordx2 s[12:13], s[0:1], {KA['ws']}")
        k("s_waitcnt lgkmcnt(0)")
        k.srd_off(16, 12, 13, OFF_DBG + 2*MB, 1*MB)
        k("s_lshl_b32 s40, s92, 4")
        k("s_mov_b64 exec, 1")
        k("v_mov_b32 v4, s66"); k("v_mov_b32 v5, s68"); k("v_mov_b32 v6, s70"); k("v_mov_b32 v7, s2")
        k("buffer_store_dwordx4 v[4:7], off, s[16:19], s40")
        k("s_mov_b64 exec, -1")
    k("s_cmp_eq_u32 s95, -1")
    k(f"s_cbranch_scc1 {Lns}")
    k(f"s_load_dwordx2 s[12:13], s[0:1], {KA['ws']}")
    k("s_waitcnt lgkmcnt(0)")
    k.srd_off(16, 12, 13, OFF_CNT, NCNT*64)
    if WB:
        k("buffer_wbl2 sc1")
        k("s_waitcnt vmcnt(0)")
    k("s_mov_b64 exec, 1")
    k("v_mov_b32 v2, 1")
    k("buffer_atomic_add v2, off, s[16:19], s95 sc1")
    k("s_mov_b64 exec, -1")
    k(f"{Lns}:")
    k("s_add_u32 s101, s101, 1")
    k(f"{Lloop}:")
    Lnc = k.label("nc")
    k("s_cmp_eq_u32 s101, 0")
    k(f"s_cbranch_scc1 {Lnc}")
    fetch(0, "s40", load_only=True)
    k("s_nop 3")
    k(f"s_cmp_lt_u32 s40, {k_rec2.NHEAD_WG}")
    k(f"s_cbranch_scc1 {Lrec}")
    k(f"{Lnc}:")
    fetch(128, "s92")
    k("s_nop 3")
    if prof:
        k("s_memrealtime s[66:67]"); k("s_memrealtime s[68:69]"); k("s_waitcnt lgkmcnt(0)")
    Lpost = k.label("post"); Lgo = k.label("go")
    k("s_mov_b32 s80, -1"); k("s_mov_b32 s82, -1")
    NM, NF = k_small.NMODWG, k_small.NFILLT
    T_LN1 = NM + NF; T_QKV = T_LN1 + 64; T_POST = T_QKV + 768
    for n_ in ("mod", "fill", "ln1"): bodies[n_] = k.label("b" + n_)
    L1 = k.label("t"); L2 = k.label("t"); L3 = k.label("t")
    k(f"s_cmp_ge_u32 s92, {NM}")
    k(f"s_cbranch_scc1 {L1}")
    k("s_mov_b32 s2, s92"); k(f"s_mov_b32 s95, {(8*16)*64}")
    k(f"s_branch {bodies['mod']}")
    k(f"{L1}:")
    k(f"s_cmp_ge_u32 s92, {T_LN1}")
    k(f"s_cbranch_scc1 {L2}")
    k(f"s_sub_u32 s2, s92, {NM}"); k(f"s_mov_b32 s95, {(8*16+1)*64}")
    k(f"s_branch {bodies['fill']}")
    k(f"{L2}:")
    k(f"s_cmp_ge_u32 s92, {T_QKV}")
    k(f"s_cbranch_scc1 {L3}")
    k(f"s_sub_u32 s2, s92, {T_LN1}")
    k("s_lshr_b32 s95, s2, 2"); k(f"s_add_u32 s95, s95, {9*16}"); k("s_lshl_b32 s95, s95, 6")
    k(f"s_mov_b32 s80, {(8*16)*64}"); k(f"s_mov_b32 s81, {NM}")
    k("s_mov_b32 s88, 6")
    k(f"s_branch {Lgo}")
    k(f"{L3}:")
    k(f"s_cmp_ge_u32 s92, {T_POST}")
    k(f"s_cbranch_scc1 {Lpost}")
    k(f"s_sub_u32 s83, s92, {T_QKV}")
    k(f"s_mov_b32 s43, {(1<<32)//48 + 1}")
    k("s_mul_hi_u32 s84, s83, s43")
    k("s_mul_i32 s85, s84, 48")
    k("s_sub_u32 s85, s83, s85")
    k("s_add_u32 s86, s85, 16"); k("s_sub_u32 s87, s85, 32")
    k("s_cmp_lt_u32 s85, 32")
    k("s_cselect_b32 s86, s86, s87")
    k(f"s_cselect_b32 s87, {ST_KV*16}, {ST_Q*16}")
    k("s_add_u32 s87, s87, s84"); k("s_lshl_b32 s95, s87, 6")
    k("s_mul_i32 s2, s84, 48"); k("s_add_u32 s2, s2, s86")
    k(f"s_add_u32 s80, s84, {9*16}"); k("s_lshl_b32 s80, s80, 6"); k("s_mov_b32 s81, 4")
    k("s_mov_b32 s88, 7")
    k(f"s_branch {Lgo}")
    k(f"{Lpost}:")
    k(f"s_sub_u32 s84, s92, {T_POST}")
    k(f"s_mov_b32 s43, {(1<<32)//108 + 1}")
    k("s_mul_hi_u32 s85, s84, s43")
    k("s_cmp_ge_u32 s85, 21")
    k(f"s_cbranch_scc1 {Lend}")
    k("s_mul_i32 s86, s85, 108")
    k("s_sub_u32 s86, s84, s86")
    tab = [(0, 4, "fin", 4, 5, [(ST_DOWN, 16)], None),
           (4, 20, "down", 16, 4, [(ST_UP, 36)], ST_DOWN),
           (20, 56, "up", 36, 3, [(ST_LN2, 4)], ST_UP),
           (56, 60, "ln2", 4, 2, [(ST_WO, 16)], ST_LN2),
           (60, 76, "wo", 16, 1, [(ST_ATT, 32)], ST_WO),
           (76, 108, "att", 32, 0, [(ST_Q, 16), (ST_KVM, 128)], ST_ATT)]
    for ti, (lo, hi, nm, mult, lag, deps, sig) in enumerate(tab):
        Ln = k.label("n")
        k(f"s_cmp_ge_u32 s86, {hi}")
        k(f"s_cbranch_scc1 {Ln}")
        k(f"s_sub_u32 s85, s85, {lag}")
        k("s_cmp_ge_u32 s85, 16")
        k(f"s_cbranch_scc1 {Lloop}")
        k(f"s_mul_i32 s2, s85, {mult}")
        k(f"s_add_u32 s2, s2, s86")
        k(f"s_sub_u32 s2, s2, {lo}")
        for di, (st, tg) in enumerate(deps):
            k(f"s_add_u32 s{80+2*di}, s85, {st*16}"); k(f"s_lshl_b32 s{80+2*di}, s{80+2*di}, 6")
            k(f"s_mov_b32 s{81+2*di}, {tg}")
        if sig is None: k("s_mov_b32 s95, -1")
        else:
            k(f"s_add_u32 s95, s85, {sig*16}"); k("s_lshl_b32 s95, s95, 6")
        k(f"s_mov_b32 s88, {ti}")
        k(f"s_branch {Lgo}")
        k(f"{Ln}:")
    k(f"{Lgo}:")
    Lw = k.label("w"); Lp = k.label("p"); Ld = k.label("d")
    k("s_cmp_lg_u32 s93, 0")
    k(f"s_cbranch_scc1 {Lw}")
    k(f"s_load_dwordx2 s[12:13], s[0:1], {KA['ws']}")
    k("s_waitcnt lgkmcnt(0)")
    k.srd_off(16, 12, 13, OFF_CNT, NCNT*64)
    k("s_cmp_eq_u32 s82, -1")
    k("s_cselect_b32 s82, s80, s82"); k("s_cselect_b32 s83, s81, s83")
    k("s_mov_b32 s89, 0")
    k(f"{Lp}:")
    k("buffer_load_dword v2, off, s[16:19], s80 sc1")
    k("buffer_load_dword v3, off, s[16:19], s82 sc1")
    k("s_waitcnt vmcnt(0)")
    k("v_readfirstlane_b32 s40, v2")
    k("v_readfirstlane_b32 s41, v3")
    k("s_nop 3")
    k("s_cmp_ge_u32 s40, s81")
    k("s_cselect_b32 s42, 1, 0")
    k("s_cmp_ge_u32 s41, s83")
    k("s_cselect_b32 s42, s42, 0")
    k("s_cmp_eq_u32 s42, 1")
    k(f"s_cbranch_scc1 {Lw}")
    k("s_sleep 8")
    k("s_add_u32 s89, s89, 1")
    k(f"s_cmp_lt_u32 s89, {DEP_LIMIT}")
    k(f"s_cbranch_scc1 {Lp}")
    k(f"{Lw}:")
    k("s_barrier")
    if prof:
        k("s_memrealtime s[68:69]"); k("s_waitcnt lgkmcnt(0)")
    names = [t[2] for t in tab] + ["ln1", "qkv"]
    for n_ in names:
        if n_ not in bodies: bodies[n_] = k.label("b" + n_)
    for idx, n_ in enumerate(names):
        k(f"s_cmp_eq_u32 s88, {idx}")
        k(f"s_cbranch_scc1 {bodies[n_]}")
    def body2(name, fn):
        k(f"{bodies[name]}:")
        fn()
        k(f"s_branch {k.Lsig}")
    body2("att", lambda: k_attn.k_attn(k=k, sc=SC))
    body2("wo", lambda: k_gemm.gemm_kernel(None, 'wo', k=k, sc=SC))
    body2("ln2", lambda: k_small.k_red_ln2(k=k, sc=SC))
    body2("down", lambda: k_gemm.gemm_kernel(None, 'down', k=k, sc=SC))
    body2("fin", lambda: k_small.k_final(k=k))
    body2("mod", lambda: k_small.k_mod(k=k, sc=SC))
    body2("fill", lambda: k_small.fill_body(k))
    body2("ln1", lambda: k_small.k_ln1(k=k, sc=SC))
    k(f"{Lend}:")
    return k
```

```python
from asmlib import K
from layout import *
import os

WOF = 0
KT = 131072
VT = 139264
WSTG = 131072
MEMB = 147456
MPITCH = 1152
QX = 156800
QPITCH = 784
LDS_BYTES = 163840
NHEAD_WG = 32
NRED_WG = 36
POLL_LIMIT = 300000
RSLEEP = int(os.environ.get('RSLEEP', '70'))
HSLEEP = int(os.environ.get('HSLEEP', '15'))
PGAP = int(os.environ.get('PGAP', '3'))

def wreg(f):
    if f < 64:
        return f"a[{4*f}:{4*f+3}]", lambda lo, hi: f"a[{4*f+lo}:{4*f+hi}]"
    b = 80 + 4*(f-64)
    return f"v[{b}:{b+3}]", lambda lo, hi: f"v[{b+lo}:{b+hi}]"

def rec_body(k, Lend, nsteps=64, prof=False, role_sreg="s2", mega=False):
    def stamp(i):
        if prof: k(f"s_memrealtime s[{64+2*i}:{65+2*i}]")
    def flush(n, tmp):
        if prof:
            k("s_waitcnt lgkmcnt(0)")
            k.srd_off(84, 12, 13, OFF_DBG, 4<<20)
            k(f"s_lshl_b32 s88, {role_sreg}, 2"); k("s_add_u32 s88, s88, s14"); k("s_lshl_b32 s88, s88, 6"); k("s_add_u32 s88, s88, s46"); k("s_lshl_b32 s88, s88, 6")
            k("s_mov_b64 exec, 1")
            for i in range(n):
                k(f"v_mov_b32 v{tmp}, s{64+2*i}")
                k(f"buffer_store_dword v{tmp}, off, s[84:87], s88 offset:{4*i}")
            k("s_mov_b64 exec, -1")
    SC = " sc1" if mega else ""
    def kv_wait(seg):
        if not mega: return
        Ls = k.label("kvs"); Lp = k.label("kvp")
        k(f"s_and_b32 s34, {seg}, 3")
        k("s_cmp_lg_u32 s34, 0")
        k(f"s_cbranch_scc1 {Ls}")
        k(f"s_cmp_ge_u32 {seg}, 64")
        k(f"s_cbranch_scc1 {Ls}")
        k(f"s_lshl_b32 s34, {seg}, 4")
        k("s_mov_b32 s35, 0")
        k(f"{Lp}:")
        k("buffer_load_dword v16, off, s[60:63], s34 sc1")
        k("s_waitcnt vmcnt(0)")
        k("v_readfirstlane_b32 s58, v16")
        k("s_nop 3")
        k("s_cmp_ge_u32 s58, 32")
        k(f"s_cbranch_scc1 {Ls}")
        k("s_sleep 8")
        k("s_add_u32 s35, s35, 1")
        k("s_cmp_lt_u32 s35, 2000000")
        k(f"s_cbranch_scc1 {Lp}")
        k(f"{Ls}:")
    def kvm_signal(step_expr_sreg):
        if not mega: return
        Ls = k.label("ks")
        k("s_cmp_lg_u32 s14, 0")
        k(f"s_cbranch_scc1 {Ls}")
        k(f"s_lshr_b32 s34, {step_expr_sreg}, 2")
        k("s_add_u32 s34, s34, 32")
        k("s_lshl_b32 s34, s34, 6")
        k("s_mov_b64 exec, 1")
        k("v_mov_b32 v16, 1")
        k("buffer_atomic_add v16, off, s[60:63], s34 sc1")
        k("s_mov_b64 exec, -1")
        k(f"{Ls}:")
    Lred = k.label("red")
    k.srd_off(16, 12, 13, OFF_PART, PART_BYTES)
    k.srd_off(20, 12, 13, OFF_MEM, MEM_BYTES)
    k(f"s_cmp_ge_u32 {role_sreg}, {NHEAD_WG}")
    k(f"s_cbranch_scc1 {Lred}")
    k.srd_off(24, 12, 13, OFF_QKV, S*12288*2)
    k.srd_off(28, 12, 13, OFF_KVM, 64*8*16384)
    k("v_lshrrev_b32 v3, 4, v1")
    k("v_and_b32 v4, 15, v1")
    k(f"s_lshl_b32 s15, {role_sreg}, 8")
    k("v_lshlrev_b32 v5, 13, v3")
    k("v_lshl_add_u32 v5, v4, 4, v5")
    k("v_lshrrev_b32 v6, 2, v4")
    k("v_lshl_add_u32 v6, v3, 3, v6")
    k("v_lshlrev_b32 v6, 8, v6")
    k("v_and_b32 v7, 3, v1")
    k("v_lshl_add_u32 v6, v7, 3, v6")
    k("s_mul_i32 s32, s14, 36")
    for mat in range(3):
        lo = 4 + 2*mat
        k.srd(36, lo, lo+1, 576*4096*2)
        k("s_barrier")
        k(f"s_mul_i32 s33, s32, {4*8192}")
        k("s_add_u32 s33, s33, s15")
        k("s_lshl_b32 s34, s32, 10")
        for i in range(36):
            k(f"s_add_u32 s35, s33, {i*4*8192}")
            k(f"s_add_u32 m0, s34, {i*1024}")
            k("s_nop 0")
            k("buffer_load_dwordx4 v5, s[36:39], s35 offen lds")
        k("s_waitcnt vmcnt(0)")
        k("s_barrier")
        for w in range(4):
            if mat < 2:
                tiles = [(i, (4*w+i) % 8) for i in range(4) if (4*w+i)//8 == mat]
            else:
                tiles = [(4+i, 2*w+i) for i in range(2)]
            if not tiles: continue
            Ls = k.label("sk")
            k(f"s_cmp_lg_u32 s14, {w}")
            k(f"s_cbranch_scc1 {Ls}")
            for (i, t) in tiles:
                for ks in range(18):
                    _, rr = wreg(i*18 + ks)
                    off = ks*32*256 + t*32
                    if ks % 6 == 0:
                        k(f"v_add_u32 v8, {(ks//6)*6*8192}, v6")
                    o2 = off - (ks//6)*6*8192
                    k(f"ds_read_b64_tr_b16 {rr(0,1)}, v8 offset:{o2}")
                    k(f"ds_read_b64_tr_b16 {rr(2,3)}, v8 offset:{o2+1024}")
                k("s_waitcnt lgkmcnt(0)")
            k(f"{Ls}:")
    k.srd(36, 10, 11, 4096*576*2)
    k(f"s_mul_i32 s33, {role_sreg}, 147456")
    k("v_lshlrev_b32 v5, 4, v1")
    k("v_lshrrev_b32 v6, 2, v4")
    k("v_lshl_add_u32 v6, v3, 2, v6")
    k("v_mul_u32_u24 v6, 1152, v6")
    k("v_lshl_add_u32 v6, v7, 3, v6")
    k("s_mul_i32 s34, s14, 288")
    k(f"s_add_u32 s34, s34, {WSTG}")
    k("v_add_u32 v6, s34, v6")
    k("s_lshl_b32 s34, s14, 15")
    k("v_lshl_add_u32 v8, v1, 4, s34")
    for u in range(8):
        k("s_barrier")
        for i in range(5):
            Ls = None
            if i == 4:
                Ls = k.label("sk"); k("s_cmp_ge_u32 s14, 2"); k(f"s_cbranch_scc1 {Ls}")
            k(f"s_add_u32 s35, s14, {4*i}")
            k("s_lshl_b32 s35, s35, 10")
            k(f"s_add_u32 m0, s35, {WSTG}")
            k(f"s_add_u32 s35, s35, {u*18432}")
            k("s_add_u32 s35, s35, s33")
            k("buffer_load_dwordx4 v5, s[36:39], s35 offen lds")
            if Ls: k(f"{Ls}:")
        k("s_waitcnt vmcnt(0)")
        k("s_barrier")
        j = u >> 1; half = u & 1
        for ct in range(9):
            k(f"ds_read_b64_tr_b16 v[{16+2*ct}:{17+2*ct}], v6 offset:{ct*32}")
        k("s_waitcnt lgkmcnt(0)")
        for ct in range(8):
            k(f"ds_write_b64 v8, v[{16+2*ct}:{17+2*ct}] offset:{(ct*4+j)*1024 + half*8}")
        k(f"v_mov_b32 v{64+4*j+2*half}, v32")
        k(f"v_mov_b32 v{64+4*j+2*half+1}, v33")
        k("s_waitcnt lgkmcnt(0)")
    k("s_barrier")
    k("v_and_b32 v9, 7, v1")
    k("v_lshlrev_b32 v2, 5, v9")
    k("v_and_b32 v5, 1, v3")
    k("v_lshl_add_u32 v2, v5, 4, v2")
    k("v_lshrrev_b32 v5, 1, v3")
    k("v_lshl_add_u32 v2, v5, 8, v2")
    k(f"v_add_u32 v2, {MEMB}, v2")
    k(f"v_mul_u32_u24 v5, {QPITCH}, v4")
    k("v_lshl_add_u32 v5, v3, 3, v5")
    k("s_lshl_b32 s34, s14, 7")
    k(f"s_add_u32 s34, s34, {QX}")
    k("v_add_u32 v0, s34, v5")
    k("s_lshl_b32 s34, s14, 6")
    k(f"s_add_u32 s34, s34, {QX+512}")
    k("v_add_u32 v5, s34, v5")
    k(f"v_mul_u32_u24 v6, {QPITCH}, v9")
    k("v_lshl_add_u32 v6, v3, 4, v6")
    k(f"v_add_u32 v6, {QX}, v6")
    k("v_xor_b32 v7, v3, v4")
    k("v_lshlrev_b32 v7, 4, v7")
    k("v_lshl_add_u32 v7, v4, 8, v7")
    k(f"v_add_u32 v7, {KT}, v7")
    k("v_lshrrev_b32 v10, 2, v4")
    k("v_lshl_add_u32 v10, v3, 2, v10")
    k("v_and_b32 v11, 7, v10")
    k("v_lshlrev_b32 v8, 8, v10")
    k("v_lshl_add_u32 v8, v11, 5, v8")
    k("v_and_b32 v12, 3, v1")
    k("v_lshl_add_u32 v8, v12, 3, v8")
    k(f"v_add_u32 v8, {VT}, v8")
    k(f"v_mul_u32_u24 v9, {QPITCH}, v11")
    k("v_lshl_add_u32 v9, v12, 3, v9")
    k(f"v_add_u32 v9, {QX + 512}, v9")
    k("s_lshl_b32 s34, s14, 15")
    k("v_lshl_add_u32 v10, v1, 4, s34")
    k("v_lshlrev_b32 v11, 6, v4")
    k("v_lshl_add_u32 v11, v3, 4, v11")
    k("s_mul_i32 s34, s14, 4608")
    k("v_add_u32 v11, s34, v11")
    k("v_lshlrev_b32 v12, 14, v4")
    k("v_lshl_add_u32 v12, v3, 3, v12")
    k("v_add_u32 v12, s15, v12")
    k("v_lshlrev_b32 v13, 4, v1")
    k("s_mul_i32 s55, s14, 3072")
    k(f"s_add_u32 s34, s55, {MEMB}")
    k("v_add_u32 v14, s34, v13")
    k("v_cmp_gt_u32 s[40:41], 8, v4")
    k("v_cmp_lt_u32 s[42:43], 31, v1")
    k("s_lshl_b32 s34, s14, 2")
    k("v_add_u32 v20, s34, v3")
    k("s_movk_i32 s35, 24576")
    k("v_mul_lo_u32 v21, v20, s35")
    k("v_xor_b32 v22, v20, v4")
    k("v_lshl_add_u32 v1, v22, 4, v21")
    k("v_lshrrev_b32 v22, 1, v4")
    k("v_and_b32 v23, 7, v20")
    k("v_xor_b32 v22, v22, v23")
    k("v_lshlrev_b32 v22, 1, v22")
    k("v_and_b32 v23, 1, v4")
    k("v_or_b32 v22, v22, v23")
    k("v_lshl_add_u32 v3, v22, 4, v21")
    k("s_mov_b32 s44, 0x3db504f3")
    k("s_mov_b32 s45, 0x3fb8aa3b")
    k("s_mov_b32 s46, 0")
    k("s_lshl_b32 s54, s14, 10")
    k("s_lshl_b32 s56, s14, 7"); k("s_sub_u32 s56, s56, 256")
    k("s_cmp_lt_u32 s14, 2")
    k("s_cselect_b32 s56, 0x7f000000, s56")
    k("s_lshl_b32 s57, s14, 6"); k("s_add_u32 s57, s57, 8192")
    def kv_dma(step_sreg):
        k(f"s_mul_i32 s47, {step_sreg}, {32*24576}")
        k("s_add_u32 s47, s47, s15")
        k("s_add_u32 s47, s47, 8192")
        k(f"s_add_u32 m0, s54, {KT}")
        k(f"s_add_u32 s35, s47, {16*24576}")
        k("buffer_load_dwordx4 v1, s[24:27], s47 offen lds")
        k(f"s_add_u32 m0, s54, {KT+4096}")
        k("s_add_u32 s47, s47, 8192")
        k("buffer_load_dwordx4 v1, s[24:27], s35 offen lds")
        k(f"s_add_u32 m0, s54, {VT}")
        k("s_add_u32 s35, s35, 8192")
        k("buffer_load_dwordx4 v3, s[24:27], s47 offen lds")
        k(f"s_add_u32 m0, s54, {VT+4096}")
        k("s_nop 0")
        k("buffer_load_dwordx4 v3, s[24:27], s35 offen lds")
    if mega: k.srd_off(60, 12, 13, OFF_CNT, 128*64)
    kv_wait("s46")
    kv_dma("s46")
    Lstep = k.label("step"); Lpoll = k.label("poll"); Lpd = k.label("pd"); Lfin = k.label("fin")
    k(f"{Lstep}:")
    if mega:
        k("s_add_u32 s53, s46, 1")
        kv_wait("s53")
    k("s_cmp_eq_u32 s14, 3")
    k(f"s_cbranch_scc1 {Lpd}")
    k("s_lshl_b32 s47, s46, 5")
    k(f"s_add_u32 s47, s47, {role_sreg}")
    k("s_cmp_eq_u32 s46, 0")
    k("s_cselect_b32 s47, 0, s47")
    k("s_mul_i32 s47, s47, 9216")
    k("s_add_u32 s47, s47, s55")
    k("s_mov_b32 s49, 0")
    k(f"s_sleep {HSLEEP}")
    def pissue():
        for i in range(3):
            k(f"s_add_u32 m0, s55, {MEMB + i*1024}")
            k(f"s_add_u32 s48, s47, {i*1024}")
            k("buffer_load_dwordx4 v13, s[20:23], s48 offen sc1 lds")
    k("s_waitcnt vmcnt(0)")
    pissue()
    k(f"s_sleep {PGAP}")
    k(f"{Lpoll}:")
    pissue()
    k("s_waitcnt vmcnt(3)")
    for i in range(3):
        k(f"ds_read_b128 v[{16+4*i}:{19+4*i}], v14 offset:{i*1024}")
    k("s_waitcnt lgkmcnt(0)")
    k("v_max3_u32 v28, v16, v17, v18")
    k("v_max3_u32 v29, v19, v20, v21")
    k("v_max3_u32 v30, v22, v23, v24")
    k("v_max3_u32 v31, v25, v26, v27")
    k("v_max3_u32 v28, v28, v29, v30")
    k("v_max_u32 v28, v28, v31")
    k("v_cmp_eq_u32 vcc, -1, v28")
    k(f"s_cbranch_vccz {Lpd}")
    k("s_add_u32 s49, s49, 1")
    k(f"s_cmp_lt_u32 s49, {POLL_LIMIT}")
    k(f"s_cbranch_scc1 {Lpoll}")
    k(f"{Lpd}:")
    stamp(0)
    k("s_barrier")
    stamp(1)
    for p in range(3):
        k(f"ds_read_b128 v[{32+4*p}:{35+4*p}], v2 offset:{p*512}")
    for i in range(16): k(f"v_mov_b32 v{16+i}, 0")
    for ks in range(18):
        k(f"s_waitcnt lgkmcnt({min(2, 17-ks)})")
        b = 32 + 4*(ks % 3)
        for i in range(4):
            nm, _ = wreg(i*18 + ks)
            k(f"v_mfma_f32_16x16x32_bf16 v[{16+4*i}:{19+4*i}], {nm}, v[{b}:{b+3}], v[{16+4*i}:{19+4*i}]")
        if ks + 3 < 18:
            k(f"ds_read_b128 v[{b}:{b+3}], v2 offset:{(ks+3)*512}")
    stamp(2)
    k("s_mul_i32 s47, s46, 131072")
    k("s_add_u32 s50, s47, s56")
    k("s_add_u32 s51, s47, s57")
    k("s_mov_b64 exec, s[40:41]")
    k("s_nop 3")
    for i in range(4):
        k(f"v_cvt_pk_bf16_f32 v{44+2*i}, v{16+4*i}, v{17+4*i}")
        k(f"v_cvt_pk_bf16_f32 v{45+2*i}, v{18+4*i}, v{19+4*i}")
        k(f"ds_write_b64 v0, v[{44+2*i}:{45+2*i}] offset:{i*32}")
    k("s_waitcnt vmcnt(0)")
    for i in range(4):
        k(f"buffer_store_dwordx2 v[{44+2*i}:{45+2*i}], v12, s[28:31], s50 offen offset:{i*32}{SC}")
    k("s_mov_b64 exec, -1")
    k("s_waitcnt lgkmcnt(0)")
    k("s_barrier")
    stamp(3)
    if mega:
        Lk0 = k.label("k0")
        k("s_cmp_eq_u32 s46, 0")
        k(f"s_cbranch_scc1 {Lk0}")
        k("s_sub_u32 s53, s46, 1")
        kvm_signal("s53")
        k(f"{Lk0}:")
    SET = [[16, 20, 24, 28], [32, 36, 40, 44]]
    def sreads(ks):
        r = SET[ks & 1]
        k(f"ds_read_b128 v[{r[0]}:{r[0]+3}], v6 offset:{ks*64}")
        k(f"ds_read_b128 v[{r[1]}:{r[1]+3}], v6 offset:{256+ks*64}")
        k(f"v_xor_b32 v60, {ks*64}, v7")
        k(f"ds_read_b128 v[{r[2]}:{r[2]+3}], v60")
        k(f"ds_read_b128 v[{r[3]}:{r[3]+3}], v60 offset:4096")
    last = nsteps - 1
    Lvonly = k.label("vonly")
    k(f"s_cmp_eq_u32 s46, {last}")
    k(f"s_cbranch_scc1 {Lvonly}")
    sreads(0); sreads(1)
    for i in range(12): k(f"v_mov_b32 v{48+i}, 0")
    for ks in range(4):
        k(f"s_waitcnt lgkmcnt({4 if ks < 3 else 0})")
        r = SET[ks & 1]
        for t in range(3):
            k(f"v_mfma_f32_16x16x32_bf16 v[{48+4*t}:{51+4*t}], v[{r[1+t]}:{r[1+t]+3}], v[{r[0]}:{r[0]+3}], v[{48+4*t}:{51+4*t}]")
        if ks + 2 < 4: sreads(ks + 2)
    k("s_lshl_b32 s52, s14, 6")
    for e2 in range(2):
        k(f"s_add_u32 s53, s52, {e2*32}")
        k("v_xor_b32 v60, s53, v8")
        k(f"ds_read_b64_tr_b16 v[{16+8*e2}:{17+8*e2}], v60")
        k(f"ds_read_b64_tr_b16 v[{18+8*e2}:{19+8*e2}], v60 offset:4096")
    vstream = []
    vstream.append("ds_read_b128 v[40:43], v2 offset:0")
    vstream.append("ds_read_b128 v[44:47], v2 offset:512")
    for i in range(8): vstream.append(f"v_mov_b32 v{32+i}, 0")
    for ks in range(18):
        b = 40 + 4*(ks % 2)
        pre = f"s_waitcnt lgkmcnt({1 if ks < 17 else 0})\n"
        for i in range(2):
            nm, _ = wreg((4+i)*18 + ks)
            vstream.append(pre + f"v_mfma_f32_16x16x32_bf16 v[{32+4*i}:{35+4*i}], {nm}, v[{b}:{b+3}], v[{32+4*i}:{35+4*i}]")
            pre = ""
        if ks + 2 < 18:
            vstream[-1] += f"\nds_read_b128 v[{b}:{b+3}], v2 offset:{(ks+2)*512}"
    sm = []
    TT = [60, 61, 62, 63, 4, 15]
    for i in range(0, 12, 2): sm.append(f"v_cvt_pk_bf16_f32 v{TT[i>>1]}, v{48+i}, v{49+i}")
    for i in range(0, 12, 2):
        sm.append(f"v_lshlrev_b32 v{48+i}, 16, v{TT[i>>1]}"); sm.append(f"v_and_b32 v{49+i}, 0xffff0000, v{TT[i>>1]}")
    for i in range(12): sm.append(f"v_mul_f32 v{48+i}, s44, v{48+i}")
    for i in range(0, 12, 2): sm.append(f"v_cvt_pk_bf16_f32 v{TT[i>>1]}, v{48+i}, v{49+i}")
    for i in range(0, 12, 2):
        sm.append(f"v_lshlrev_b32 v{48+i}, 16, v{TT[i>>1]}"); sm.append(f"v_and_b32 v{49+i}, 0xffff0000, v{TT[i>>1]}")
    sm.append("v_mov_b32 v4, 0xff800000")
    for i in range(4): sm.append(f"v_cndmask_b32 v{48+i}, v{48+i}, v4, s[42:43]")
    sm += ["v_max3_f32 v60, v48, v49, v50", "v_max3_f32 v61, v51, v52, v53", "v_max3_f32 v62, v54, v55, v56",
           "v_max3_f32 v63, v57, v58, v59", "v_max3_f32 v60, v60, v61, v62", "v_max_f32 v60, v60, v63"]
    def xred(op, r, t):
        return [f"v_mov_b32 v{t}, v{r}\ns_nop 1\nv_permlane32_swap_b32 v{r}, v{t}", f"{op} v{r}, v{r}, v{t}",
                f"v_mov_b32 v{t}, v{r}\ns_nop 1\nv_permlane16_swap_b32 v{r}, v{t}", f"{op} v{r}, v{r}, v{t}"]
    sm += xred("v_max_f32", 60, 61)
    sm.append("v_mul_f32 v60, s45, v60")
    for i in range(12): sm.append(f"v_fma_f32 v{48+i}, v{48+i}, s45, -v60")
    for i in range(12): sm.append(f"v_exp_f32 v{48+i}, v{48+i}")
    sm.append("s_nop 0")
    sm += ["v_add_f32 v60, v48, v49", "v_add_f32 v61, v50, v51", "v_add_f32 v62, v52, v53", "v_add_f32 v63, v54, v55",
           "v_add_f32 v4, v56, v57", "v_add_f32 v15, v58, v59", "v_add_f32 v60, v60, v61", "v_add_f32 v62, v62, v63",
           "v_add_f32 v4, v4, v15", "v_add_f32 v60, v60, v62", "v_add_f32 v60, v60, v4"]
    sm += xred("v_add_f32", 60, 61)
    sm.append("v_rcp_f32 v61, v60\ns_nop 0")
    for i in range(12): sm.append(f"v_mul_f32 v{48+i}, v{48+i}, v61")
    sm += ["v_cvt_pk_bf16_f32 v22, v48, v49", "v_cvt_pk_bf16_f32 v23, v50, v51", "v_cvt_pk_bf16_f32 v60, v52, v53",
           "v_cvt_pk_bf16_f32 v61, v54, v55", "v_cvt_pk_bf16_f32 v62, v56, v57", "v_cvt_pk_bf16_f32 v63, v58, v59"]
    for x in vstream[:10]: k(x)
    vs = vstream[10:]
    n, m = len(sm), len(vs); j = 0
    for i, x in enumerate(sm):
        k(x)
        tgt = min(m, (i + 1) * m // (n - 12))
        while j < tgt: k(vs[j]); j += 1
    while j < m: k(vs[j]); j += 1
    Lvj = k.label("vj")
    k(f"s_branch {Lvj}")
    k(f"{Lvonly}:")
    for x in vstream: k(x)
    k(f"{Lvj}:")
    k("s_mov_b64 exec, s[40:41]")
    k("s_nop 6")
    for i in range(2):
        k(f"v_cvt_pk_bf16_f32 v{40+2*i}, v{32+4*i}, v{33+4*i}")
        k(f"v_cvt_pk_bf16_f32 v{41+2*i}, v{34+4*i}, v{35+4*i}")
        k(f"ds_write_b64 v5, v[{40+2*i}:{41+2*i}] offset:{i*32}")
    for i in range(2):
        k(f"buffer_store_dwordx2 v[{40+2*i}:{41+2*i}], v12, s[28:31], s51 offen offset:{i*32}{SC}")
    k("s_mov_b64 exec, -1")
    k(f"s_cmp_eq_u32 s46, {last}")
    k(f"s_cbranch_scc1 {Lfin}")
    for i in range(8): k(f"v_mov_b32 v{32+i}, 0")
    k("s_waitcnt lgkmcnt(0)")
    k("s_barrier")
    stamp(4)
    for e2 in range(2):
        k(f"s_add_u32 s53, s52, {e2*32}")
        k("v_add_u32 v4, s53, v9")
        k(f"ds_read_b64_tr_b16 v[{20+8*e2}:{21+8*e2}], v4")
    for e2 in range(2):
        k(f"v_mfma_f32_16x16x32_bf16 v[{32+4*e2}:{35+4*e2}], v[{16+8*e2}:{19+8*e2}], v[60:63], v[{32+4*e2}:{35+4*e2}]")
    k("v_add_u32 v44, s52, v6")
    k("s_waitcnt lgkmcnt(0)")
    k("s_nop 4")
    for e2 in range(2):
        k(f"v_mfma_f32_16x16x16_bf16 v[{32+4*e2}:{35+4*e2}], v[{20+8*e2}:{21+8*e2}], v[22:23], v[{32+4*e2}:{35+4*e2}]")
    NB = 4
    lds_seq = [(ct, j) for ct in range(8) for j in range(4)]
    def issue(idx):
        ct, j = lds_seq[idx]
        b = 48 + 4*(idx % NB)
        k(f"ds_read_b128 v[{b}:{b+3}], v10 offset:{(ct*4+j)*1024}")
    issued = 0
    for p in range(NB): issue(p); issued += 1
    k("s_nop 3")
    k("v_cvt_pk_bf16_f32 v40, v32, v33"); k("v_cvt_pk_bf16_f32 v41, v34, v35")
    k("v_cvt_pk_bf16_f32 v42, v36, v37"); k("v_cvt_pk_bf16_f32 v43, v38, v39")
    k("s_mov_b64 exec, s[40:41]")
    k("ds_write_b128 v44, v[40:43]")
    k("s_mov_b64 exec, -1")
    for i in range(12): k(f"v_mov_b32 v{32+i}, 0") if i < 8 else None
    k("s_waitcnt lgkmcnt(0)")
    k("s_barrier")
    stamp(5)
    for j in range(4):
        k(f"ds_read_b128 v[{16+4*j}:{19+4*j}], v6 offset:{j*64}")
    k("s_add_u32 s53, s46, 1")
    kv_dma("s53")
    k("s_mul_i32 s47, s46, 32")
    k(f"s_add_u32 s47, s47, {role_sreg}")
    k("s_mul_i32 s47, s47, 18432")
    for i in range(4): k(f"v_mov_b32 v{40+i}, 0")
    order = [8] + list(range(8))
    used = 0; pend = None
    def store_tile(ct, a):
        k("s_mov_b64 exec, s[40:41]")
        if ct == 8:
            k("s_add_u32 s50, s47, 4096")
            k(f"buffer_store_dwordx4 v[{a}:{a+3}], v11, s[16:19], s50 offen sc1")
        else:
            k(f"buffer_store_dwordx4 v[{a}:{a+3}], v11, s[16:19], s47 offen offset:{ct*512} sc1")
        k("s_mov_b64 exec, -1")
    for n, ct in enumerate(order):
        a = 32 + 4*(n % 3)
        if n >= 3:
            for i in range(4): k(f"v_mov_b32 v{a+i}, 0")
            k("s_nop 1")
        for j in range(4):
            if ct == 8:
                if j == 0: k("s_waitcnt lgkmcnt(0)")
                k(f"v_mfma_f32_16x16x32_bf16 v[{a}:{a+3}], v[{64+4*j}:{67+4*j}], v[{16+4*j}:{19+4*j}], v[{a}:{a+3}]")
            else:
                k(f"s_waitcnt lgkmcnt({issued - used - 1})")
                b = 48 + 4*(used % NB)
                k(f"v_mfma_f32_16x16x32_bf16 v[{a}:{a+3}], v[{b}:{b+3}], v[{16+4*j}:{19+4*j}], v[{a}:{a+3}]")
                used += 1
                if issued < len(lds_seq): issue(issued); issued += 1
        if pend is not None: store_tile(*pend)
        pend = (ct, a)
    k("s_nop 7")
    store_tile(*pend)
    stamp(6)
    flush(7, 62)
    k("s_add_u32 s46, s46, 1")
    k(f"s_branch {Lstep}")
    k(f"{Lfin}:")
    if mega:
        k("s_waitcnt vmcnt(0)")
        k("s_barrier")
        kvm_signal("s46")
    k(f"s_branch {Lend}")
    k(f"{Lred}:")
    k(f"s_sub_u32 s15, {role_sreg}, {NHEAD_WG}")
    k("s_lshl_b32 s32, s15, 9")
    k("s_lshl_b32 s33, s14, 7")
    k("s_add_u32 s32, s32, s33")
    k("v_lshrrev_b32 v5, 3, v1")
    k("v_and_b32 v4, 7, v1")
    k("v_mul_u32_u24 v2, 18432, v5")
    k("v_lshl_add_u32 v2, v4, 4, v2")
    k("v_add_u32 v2, s32, v2")
    k("s_lshl_b32 s33, s14, 6")
    k("s_lshl_b32 s32, s15, 8")
    k("s_add_u32 s32, s32, s33")
    k("v_lshl_add_u32 v3, v4, 3, s32")
    k("v_mul_u32_u24 v6, 9216, v5")
    k("v_add_u32 v3, v3, v6")
    k("s_mov_b32 s46, 0")
    Lrs = k.label("rs"); Lrp = k.label("rp"); Lrd = k.label("rd")
    k(f"{Lrs}:")
    k(f"s_mul_i32 s47, s46, {32*18432}")
    k("s_mov_b32 s49, 0")
    k(f"s_sleep {RSLEEP}")
    NS = int(os.environ.get('NS', '3'))
    def rissue(s_):
        for i in range(4):
            k(f"s_add_u32 s48, s47, {i*8*18432}")
            k(f"buffer_load_dwordx4 v[{16+16*s_+4*i}:{19+16*s_+4*i}], v2, s[16:19], s48 offen sc1")
    k("s_waitcnt vmcnt(0)")
    for s_ in range(NS-1):
        rissue(s_); k(f"s_sleep {PGAP}")
    k(f"{Lrp}:")
    for s_ in range(NS):
        rissue((s_ + NS - 1) % NS)
        k(f"s_waitcnt vmcnt({4*(NS-1)})")
        b = 16 + 16*s_
        for r in range(4):
            k(f"v_add_f32 v{8+r}, v{b+r}, v{b+4+r}")
            k(f"v_add_f32 v{12+r}, v{b+8+r}, v{b+12+r}")
        for r in range(4):
            k(f"v_add_f32 v{8+r}, v{8+r}, v{12+r}")
        k("v_add_f32 v12, v8, v9")
        k("v_add_f32 v13, v10, v11")
        k("v_cmp_u_f32 vcc, v12, v13")
        k(f"s_cbranch_vccz {Lrd}")
    k("s_add_u32 s49, s49, 1")
    k(f"s_cmp_lt_u32 s49, {POLL_LIMIT}")
    k(f"s_cbranch_scc1 {Lrp}")
    k(f"{Lrd}:")
    stamp(0)
    for r in range(4): k(f"v_mov_b32 v{12+r}, v{8+r}")
    k("s_nop 0")
    for r in range(4): k(f"v_permlane32_swap_b32 v{8+r}, v{12+r}")
    for r in range(4): k(f"v_add_f32 v{8+r}, v{8+r}, v{12+r}")
    for r in range(4): k(f"v_mov_b32 v{12+r}, v{8+r}")
    k("s_nop 0")
    for r in range(4): k(f"v_permlane16_swap_b32 v{8+r}, v{12+r}")
    for r in range(4): k(f"v_add_f32 v{8+r}, v{8+r}, v{12+r}")
    k("s_nop 1")
    for r in range(4): k(f"v_add_f32_dpp v{8+r}, v{8+r}, v{8+r} row_ror:8 row_mask:0xf bank_mask:0xf")
    k("v_cvt_pk_bf16_f32 v4, v8, v9")
    k("v_cvt_pk_bf16_f32 v5, v10, v11")
    k("v_min_u32 v4, 0xfffffffe, v4")
    k("v_min_u32 v5, 0xfffffffe, v5")
    k("s_add_u32 s48, s46, 1")
    k(f"s_mul_i32 s48, s48, {32*9216}")
    for i in range(4):
        k("buffer_store_dwordx2 v[4:5], v3, s[20:23], s48 offen sc1")
        if i < 3: k(f"s_add_u32 s48, s48, {8*9216}")
    if prof:
        stamp(1)
        k("s_waitcnt vmcnt(0)")
        stamp(2)
        flush(3, 6)
    k("s_add_u32 s46, s46, 1")
    k(f"s_cmp_lt_u32 s46, {nsteps-1}")
    k(f"s_cbranch_scc1 {Lrs}")
    k(f"s_branch {Lend}")

def k_rec(nsteps=64, prof=False):
    k = K("rec_kernel")
    k.vgpr = 512; k.accum = 256; k.sgpr = 96
    Lend = k.label("end")
    k(f"s_cmp_ge_u32 s2, {NHEAD_WG + NRED_WG}")
    k(f"s_cbranch_scc1 {Lend}")
    k(f"s_load_dwordx4 s[4:7], s[0:1], {KA['Wq']}")
    k(f"s_load_dwordx4 s[8:11], s[0:1], {KA['Wv']}")
    k(f"s_load_dwordx2 s[12:13], s[0:1], {KA['ws']}")
    k("v_and_b32 v1, 63, v0")
    k("v_lshrrev_b32 v2, 6, v0")
    k("s_nop 0")
    k("v_readfirstlane_b32 s14, v2")
    k("s_waitcnt lgkmcnt(0)")
    rec_body(k, Lend, nsteps, prof)
    k(f"{Lend}:")
    return k
```

```python
from asmlib import K
from layout import *
import os

WOF = 0
KT = 131072
VT = 139264
WSTG = 131072
MEMB = 147456
MPITCH = 1152
QX = 156800
QPITCH = 784
LDS_BYTES = 163840
NHEAD_WG = 32
NRED_WG = 0
POLL_LIMIT = 300000
RSLEEP = int(os.environ.get('RSLEEP', '70'))
HSLEEP = int(os.environ.get('HSLEEP', '15'))
PGAP = int(os.environ.get('PGAP', '3'))

def wreg(f):
    if f < 64:
        return f"a[{4*f}:{4*f+3}]", lambda lo, hi: f"a[{4*f+lo}:{4*f+hi}]"
    b = 80 + 4*(f-64)
    return f"v[{b}:{b+3}]", lambda lo, hi: f"v[{b+lo}:{b+hi}]"

def rec_body(k, Lend, nsteps=64, prof=False, role_sreg="s2", mega=False):
    def stamp(i):
        if prof: k(f"s_memrealtime s[{64+2*i}:{65+2*i}]")
    def flush(n, tmp):
        if prof:
            k("s_waitcnt lgkmcnt(0)")
            k.srd_off(84, 12, 13, OFF_DBG, 4<<20)
            k(f"s_lshl_b32 s88, {role_sreg}, 2"); k("s_add_u32 s88, s88, s14"); k("s_lshl_b32 s88, s88, 6"); k("s_add_u32 s88, s88, s46"); k("s_lshl_b32 s88, s88, 6")
            k("s_mov_b64 exec, 1")
            for i in range(n):
                k(f"v_mov_b32 v{tmp}, s{64+2*i}")
                k(f"buffer_store_dword v{tmp}, off, s[84:87], s88 offset:{4*i}")
            k("s_mov_b64 exec, -1")
    SC = " sc1" if mega else ""
    def kv_wait(seg):
        if not mega: return
        Ls = k.label("kvs"); Lp = k.label("kvp")
        k(f"s_and_b32 s34, {seg}, 3")
        k("s_cmp_lg_u32 s34, 0")
        k(f"s_cbranch_scc1 {Ls}")
        k(f"s_cmp_ge_u32 {seg}, 64")
        k(f"s_cbranch_scc1 {Ls}")
        k(f"s_lshl_b32 s34, {seg}, 4")
        k("s_mov_b32 s35, 0")
        k(f"{Lp}:")
        k("buffer_load_dword v16, off, s[60:63], s34 sc1")
        k("s_waitcnt vmcnt(0)")
        k("v_readfirstlane_b32 s58, v16")
        k("s_nop 3")
        k("s_cmp_ge_u32 s58, 32")
        k(f"s_cbranch_scc1 {Ls}")
        k("s_sleep 8")
        k("s_add_u32 s35, s35, 1")
        k("s_cmp_lt_u32 s35, 2000000")
        k(f"s_cbranch_scc1 {Lp}")
        k(f"{Ls}:")
    def kvm_signal(step_expr_sreg):
        if not mega: return
        Ls = k.label("ks")
        k("s_cmp_lg_u32 s14, 0")
        k(f"s_cbranch_scc1 {Ls}")
        k(f"s_lshr_b32 s34, {step_expr_sreg}, 2")
        k("s_add_u32 s34, s34, 32")
        k("s_lshl_b32 s34, s34, 6")
        k("s_mov_b64 exec, 1")
        k("v_mov_b32 v16, 1")
        k("buffer_atomic_add v16, off, s[60:63], s34 sc1")
        k("s_mov_b64 exec, -1")
        k(f"{Ls}:")
    Lred = k.label("red")
    k.srd_off(16, 12, 13, OFF_PART, PART_BYTES)
    k.srd_off(20, 12, 13, OFF_MEM, OFF_M0 + 9216 - OFF_MEM)
    k.srd_off(24, 12, 13, OFF_QKV, S*12288*2)
    k.srd_off(28, 12, 13, OFF_KVM, 64*8*16384)
    k("v_lshrrev_b32 v3, 4, v1")
    k("v_and_b32 v4, 15, v1")
    k(f"s_lshl_b32 s15, {role_sreg}, 8")
    k("v_lshlrev_b32 v5, 13, v3")
    k("v_lshl_add_u32 v5, v4, 4, v5")
    k("v_lshrrev_b32 v6, 2, v4")
    k("v_lshl_add_u32 v6, v3, 3, v6")
    k("v_lshlrev_b32 v6, 8, v6")
    k("v_and_b32 v7, 3, v1")
    k("v_lshl_add_u32 v6, v7, 3, v6")
    k("s_mul_i32 s32, s14, 36")
    for mat in range(3):
        lo = 4 + 2*mat
        k.srd(36, lo, lo+1, 576*4096*2)
        k("s_barrier")
        k(f"s_mul_i32 s33, s32, {4*8192}")
        k("s_add_u32 s33, s33, s15")
        k("s_lshl_b32 s34, s32, 10")
        for i in range(36):
            k(f"s_add_u32 s35, s33, {i*4*8192}")
            k(f"s_add_u32 m0, s34, {i*1024}")
            k("s_nop 0")
            k("buffer_load_dwordx4 v5, s[36:39], s35 offen lds")
        k("s_waitcnt vmcnt(0)")
        k("s_barrier")
        for w in range(4):
            if mat < 2:
                tiles = [(i, (4*w+i) % 8) for i in range(4) if (4*w+i)//8 == mat]
            else:
                tiles = [(4+i, 2*w+i) for i in range(2)]
            if not tiles: continue
            Ls = k.label("sk")
            k(f"s_cmp_lg_u32 s14, {w}")
            k(f"s_cbranch_scc1 {Ls}")
            for (i, t) in tiles:
                for ks in range(18):
                    _, rr = wreg(i*18 + ks)
                    off = ks*32*256 + t*32
                    if ks % 6 == 0:
                        k(f"v_add_u32 v8, {(ks//6)*6*8192}, v6")
                    o2 = off - (ks//6)*6*8192
                    k(f"ds_read_b64_tr_b16 {rr(0,1)}, v8 offset:{o2}")
                    k(f"ds_read_b64_tr_b16 {rr(2,3)}, v8 offset:{o2+1024}")
                k("s_waitcnt lgkmcnt(0)")
            k(f"{Ls}:")
    k.srd(36, 10, 11, 4096*576*2)
    k(f"s_mul_i32 s33, {role_sreg}, 147456")
    k("v_lshlrev_b32 v5, 4, v1")
    k("v_lshrrev_b32 v6, 2, v4")
    k("v_lshl_add_u32 v6, v3, 2, v6")
    k("v_mul_u32_u24 v6, 1152, v6")
    k("v_lshl_add_u32 v6, v7, 3, v6")
    k("s_mul_i32 s34, s14, 288")
    k(f"s_add_u32 s34, s34, {WSTG}")
    k("v_add_u32 v6, s34, v6")
    k("s_lshl_b32 s34, s14, 15")
    k("v_lshl_add_u32 v8, v1, 4, s34")
    for u in range(8):
        k("s_barrier")
        for i in range(5):
            Ls = None
            if i == 4:
                Ls = k.label("sk"); k("s_cmp_ge_u32 s14, 2"); k(f"s_cbranch_scc1 {Ls}")
            k(f"s_add_u32 s35, s14, {4*i}")
            k("s_lshl_b32 s35, s35, 10")
            k(f"s_add_u32 m0, s35, {WSTG}")
            k(f"s_add_u32 s35, s35, {u*18432}")
            k("s_add_u32 s35, s35, s33")
            k("buffer_load_dwordx4 v5, s[36:39], s35 offen lds")
            if Ls: k(f"{Ls}:")
        k("s_waitcnt vmcnt(0)")
        k("s_barrier")
        j = u >> 1; half = u & 1
        for ct in range(9):
            k(f"ds_read_b64_tr_b16 v[{16+2*ct}:{17+2*ct}], v6 offset:{ct*32}")
        k("s_waitcnt lgkmcnt(0)")
        for ct in range(8):
            k(f"ds_write_b64 v8, v[{16+2*ct}:{17+2*ct}] offset:{(ct*4+j)*1024 + half*8}")
        k(f"v_mov_b32 v{64+4*j+2*half}, v32")
        k(f"v_mov_b32 v{64+4*j+2*half+1}, v33")
        k("s_waitcnt lgkmcnt(0)")
    k("s_barrier")
    k("v_and_b32 v9, 7, v1")
    k("v_lshlrev_b32 v2, 5, v9")
    k("v_and_b32 v5, 1, v3")
    k("v_lshl_add_u32 v2, v5, 4, v2")
    k("v_lshrrev_b32 v5, 1, v3")
    k("v_lshl_add_u32 v2, v5, 8, v2")
    k(f"v_add_u32 v2, {MEMB}, v2")
    k(f"v_mul_u32_u24 v5, {QPITCH}, v4")
    k("v_lshl_add_u32 v5, v3, 3, v5")
    k("s_lshl_b32 s34, s14, 7")
    k(f"s_add_u32 s34, s34, {QX}")
    k("v_add_u32 v0, s34, v5")
    k("s_lshl_b32 s34, s14, 6")
    k(f"s_add_u32 s34, s34, {QX+512}")
    k("v_add_u32 v5, s34, v5")
    k(f"v_mul_u32_u24 v6, {QPITCH}, v9")
    k("v_lshl_add_u32 v6, v3, 4, v6")
    k(f"v_add_u32 v6, {QX}, v6")
    k("v_xor_b32 v7, v3, v4")
    k("v_lshlrev_b32 v7, 4, v7")
    k("v_lshl_add_u32 v7, v4, 8, v7")
    k(f"v_add_u32 v7, {KT}, v7")
    k("v_lshrrev_b32 v10, 2, v4")
    k("v_lshl_add_u32 v10, v3, 2, v10")
    k("v_and_b32 v11, 7, v10")
    k("v_lshlrev_b32 v8, 8, v10")
    k("v_lshl_add_u32 v8, v11, 5, v8")
    k("v_and_b32 v12, 3, v1")
    k("v_lshl_add_u32 v8, v12, 3, v8")
    k(f"v_add_u32 v8, {VT}, v8")
    k(f"v_mul_u32_u24 v9, {QPITCH}, v11")
    k("v_lshl_add_u32 v9, v12, 3, v9")
    k(f"v_add_u32 v9, {QX + 512}, v9")
    k("s_lshl_b32 s34, s14, 15")
    k("v_lshl_add_u32 v10, v1, 4, s34")
    k("v_lshlrev_b32 v11, 6, v4")
    k("v_lshl_add_u32 v11, v3, 4, v11")
    k("s_mul_i32 s34, s14, 4608")
    k("v_add_u32 v11, s34, v11")
    k("v_lshlrev_b32 v12, 14, v4")
    k("v_lshl_add_u32 v12, v3, 3, v12")
    k("v_add_u32 v12, s15, v12")
    k("v_lshlrev_b32 v13, 4, v1")
    k("s_mul_i32 s55, s14, 3072")
    k(f"s_add_u32 s34, s55, {MEMB}")
    k("v_add_u32 v14, s34, v13")
    k("v_cmp_gt_u32 s[40:41], 8, v4")
    k("v_cmp_lt_u32 s[42:43], 31, v1")
    k("s_lshl_b32 s34, s14, 2")
    k("v_add_u32 v20, s34, v3")
    k("s_movk_i32 s35, 24576")
    k("v_mul_lo_u32 v21, v20, s35")
    k("v_xor_b32 v22, v20, v4")
    k("v_lshl_add_u32 v1, v22, 4, v21")
    k("v_lshrrev_b32 v22, 1, v4")
    k("v_and_b32 v23, 7, v20")
    k("v_xor_b32 v22, v22, v23")
    k("v_lshlrev_b32 v22, 1, v22")
    k("v_and_b32 v23, 1, v4")
    k("v_or_b32 v22, v22, v23")
    k("v_lshl_add_u32 v3, v22, 4, v21")
    k("s_mov_b32 s44, 0x3db504f3")
    k("s_mov_b32 s45, 0x3fb8aa3b")
    k("s_mov_b32 s46, 0")
    k("s_lshl_b32 s54, s14, 10")
    k("s_lshl_b32 s56, s14, 7"); k("s_sub_u32 s56, s56, 256")
    k("s_cmp_lt_u32 s14, 2")
    k("s_cselect_b32 s56, 0x7f000000, s56")
    k("s_lshl_b32 s57, s14, 6"); k("s_add_u32 s57, s57, 8192")
    def kv_dma(step_sreg):
        k(f"s_mul_i32 s47, {step_sreg}, {32*24576}")
        k("s_add_u32 s47, s47, s15")
        k("s_add_u32 s47, s47, 8192")
        k(f"s_add_u32 m0, s54, {KT}")
        k(f"s_add_u32 s35, s47, {16*24576}")
        k("buffer_load_dwordx4 v1, s[24:27], s47 offen lds")
        k(f"s_add_u32 m0, s54, {KT+4096}")
        k("s_add_u32 s47, s47, 8192")
        k("buffer_load_dwordx4 v1, s[24:27], s35 offen lds")
        k(f"s_add_u32 m0, s54, {VT}")
        k("s_add_u32 s35, s35, 8192")
        k("buffer_load_dwordx4 v3, s[24:27], s47 offen lds")
        k(f"s_add_u32 m0, s54, {VT+4096}")
        k("s_nop 0")
        k("buffer_load_dwordx4 v3, s[24:27], s35 offen lds")
    k.srd_off(60, 12, 13, OFF_CNT, NCNT*64)
    k("s_getreg_b32 s34, hwreg(HW_REG_XCC_ID)")
    k("s_and_b32 s34, s34, 15")
    k("s_add_u32 s34, s34, 1")
    k(f"s_lshl_b32 s35, {role_sreg}, 2")
    k(f"s_add_u32 s35, s35, {XT_OFF}")
    k("v_mov_b32 v16, s34")
    k("s_mov_b64 exec, 1")
    k("buffer_store_dword v16, off, s[60:63], s35 sc1")
    k("s_mov_b64 exec, -1")
    k("v_lshrrev_b32 v17, 4, v13")
    k("v_and_b32 v17, 31, v17")
    k("v_lshlrev_b32 v17, 2, v17")
    k(f"v_add_u32 v17, {XT_OFF}, v17")
    Lh = k.label("hs"); Lhd = k.label("hd")
    k("s_mov_b32 s35, 0")
    k(f"{Lh}:")
    k("buffer_load_dword v18, v17, s[60:63], 0 offen sc1")
    k("s_waitcnt vmcnt(0)")
    k("v_cmp_eq_u32 vcc, 0, v18")
    k(f"s_cbranch_vccz {Lhd}")
    k("s_sleep 4")
    k("s_add_u32 s35, s35, 1")
    k("s_cmp_lt_u32 s35, 4000000")
    k(f"s_cbranch_scc1 {Lh}")
    k(f"{Lhd}:")
    k("v_cmp_ne_u32 vcc, s34, v18")
    k("s_cmp_eq_u64 vcc, 0")
    k("s_cselect_b32 s59, 1, 0")
    if os.environ.get("FORCE_SLOW") == "1": k("s_mov_b32 s59, 0")
    for (off, tgt) in (((8*16+1)*64, FILL_BYTES // (512*1024)), ((9*16)*64, 4)):
        Lp = k.label("fw"); Ls = k.label("fd")
        k("s_mov_b32 s35, 0")
        k(f"s_mov_b32 s34, {off}")
        k(f"{Lp}:")
        k("buffer_load_dword v16, off, s[60:63], s34 sc1")
        k("s_waitcnt vmcnt(0)")
        k("v_readfirstlane_b32 s58, v16")
        k("s_nop 3")
        k(f"s_cmp_ge_u32 s58, {tgt}")
        k(f"s_cbranch_scc1 {Ls}")
        k("s_sleep 8")
        k("s_add_u32 s35, s35, 1")
        k("s_cmp_lt_u32 s35, 2000000")
        k(f"s_cbranch_scc1 {Lp}")
        k(f"{Ls}:")
    kv_wait("s46")
    kv_dma("s46")
    Lstep = k.label("step"); Lpoll = k.label("poll"); Lpd = k.label("pd"); Lfin = k.label("fin")
    k(f"{Lstep}:")
    if mega:
        k("s_add_u32 s53, s46, 1")
        kv_wait("s53")
    k("s_cmp_eq_u32 s14, 3")
    k(f"s_cbranch_scc1 {Lpd}")
    k("s_mul_i32 s47, s46, 9216")
    k("s_cmp_eq_u32 s46, 0")
    k(f"s_cselect_b32 s47, {OFF_M0 - OFF_MEM}, s47")
    k("s_add_u32 s47, s47, s55")
    k("s_mov_b32 s49, 0")
    k(f"s_sleep {HSLEEP}")
    def pissue():
        for i in range(3):
            k(f"s_add_u32 m0, s55, {MEMB + i*1024}")
            k(f"s_add_u32 s48, s47, {i*1024}")
            k("buffer_load_dwordx4 v13, s[20:23], s48 offen sc1 lds")
    k("s_waitcnt vmcnt(0)")
    pissue()
    k(f"s_sleep {PGAP}")
    k(f"{Lpoll}:")
    pissue()
    k("s_waitcnt vmcnt(3)")
    for i in range(3):
        k(f"ds_read_b128 v[{16+4*i}:{19+4*i}], v14 offset:{i*1024}")
    k("s_waitcnt lgkmcnt(0)")
    k("v_max3_u32 v28, v16, v17, v18")
    k("v_max3_u32 v29, v19, v20, v21")
    k("v_max3_u32 v30, v22, v23, v24")
    k("v_max3_u32 v31, v25, v26, v27")
    k("v_max3_u32 v28, v28, v29, v30")
    k("v_max_u32 v28, v28, v31")
    k("v_cmp_eq_u32 vcc, -1, v28")
    k(f"s_cbranch_vccz {Lpd}")
    k("s_add_u32 s49, s49, 1")
    k(f"s_cmp_lt_u32 s49, {POLL_LIMIT}")
    k(f"s_cbranch_scc1 {Lpoll}")
    k(f"{Lpd}:")
    stamp(0)
    k("s_barrier")
    stamp(1)
    for p in range(3):
        k(f"ds_read_b128 v[{32+4*p}:{35+4*p}], v2 offset:{p*512}")
    for i in range(16): k(f"v_mov_b32 v{16+i}, 0")
    for ks in range(18):
        k(f"s_waitcnt lgkmcnt({min(2, 17-ks)})")
        b = 32 + 4*(ks % 3)
        for i in range(4):
            nm, _ = wreg(i*18 + ks)
            k(f"v_mfma_f32_16x16x32_bf16 v[{16+4*i}:{19+4*i}], {nm}, v[{b}:{b+3}], v[{16+4*i}:{19+4*i}]")
        if ks + 3 < 18:
            k(f"ds_read_b128 v[{b}:{b+3}], v2 offset:{(ks+3)*512}")
    stamp(2)
    k("s_mul_i32 s47, s46, 131072")
    k("s_add_u32 s50, s47, s56")
    k("s_add_u32 s51, s47, s57")
    k("s_mov_b64 exec, s[40:41]")
    k("s_nop 3")
    for i in range(4):
        k(f"v_cvt_pk_bf16_f32 v{44+2*i}, v{16+4*i}, v{17+4*i}")
        k(f"v_cvt_pk_bf16_f32 v{45+2*i}, v{18+4*i}, v{19+4*i}")
        k(f"ds_write_b64 v0, v[{44+2*i}:{45+2*i}] offset:{i*32}")
    k("s_waitcnt vmcnt(0)")
    for i in range(4):
        k(f"buffer_store_dwordx2 v[{44+2*i}:{45+2*i}], v12, s[28:31], s50 offen offset:{i*32}{SC}")
    k("s_mov_b64 exec, -1")
    k("s_waitcnt lgkmcnt(0)")
    k("s_barrier")
    stamp(3)
    if mega:
        Lk0 = k.label("k0")
        k("s_cmp_eq_u32 s46, 0")
        k(f"s_cbranch_scc1 {Lk0}")
        k("s_sub_u32 s53, s46, 1")
        kvm_signal("s53")
        k(f"{Lk0}:")
    SET = [[16, 20, 24, 28], [32, 36, 40, 44]]
    def sreads(ks):
        r = SET[ks & 1]
        k(f"ds_read_b128 v[{r[0]}:{r[0]+3}], v6 offset:{ks*64}")
        k(f"ds_read_b128 v[{r[1]}:{r[1]+3}], v6 offset:{256+ks*64}")
        k(f"v_xor_b32 v60, {ks*64}, v7")
        k(f"ds_read_b128 v[{r[2]}:{r[2]+3}], v60")
        k(f"ds_read_b128 v[{r[3]}:{r[3]+3}], v60 offset:4096")
    last = nsteps - 1
    Lvonly = k.label("vonly")
    k(f"s_cmp_eq_u32 s46, {last}")
    k(f"s_cbranch_scc1 {Lvonly}")
    sreads(0); sreads(1)
    for i in range(12): k(f"v_mov_b32 v{48+i}, 0")
    for ks in range(4):
        k(f"s_waitcnt lgkmcnt({4 if ks < 3 else 0})")
        r = SET[ks & 1]
        for t in range(3):
            k(f"v_mfma_f32_16x16x32_bf16 v[{48+4*t}:{51+4*t}], v[{r[1+t]}:{r[1+t]+3}], v[{r[0]}:{r[0]+3}], v[{48+4*t}:{51+4*t}]")
        if ks + 2 < 4: sreads(ks + 2)
    k("s_lshl_b32 s52, s14, 6")
    for e2 in range(2):
        k(f"s_add_u32 s53, s52, {e2*32}")
        k("v_xor_b32 v60, s53, v8")
        k(f"ds_read_b64_tr_b16 v[{16+8*e2}:{17+8*e2}], v60")
        k(f"ds_read_b64_tr_b16 v[{18+8*e2}:{19+8*e2}], v60 offset:4096")
    vstream = []
    vstream.append("ds_read_b128 v[40:43], v2 offset:0")
    vstream.append("ds_read_b128 v[44:47], v2 offset:512")
    for i in range(8): vstream.append(f"v_mov_b32 v{32+i}, 0")
    for ks in range(18):
        b = 40 + 4*(ks % 2)
        pre = f"s_waitcnt lgkmcnt({1 if ks < 17 else 0})\n"
        for i in range(2):
            nm, _ = wreg((4+i)*18 + ks)
            vstream.append(pre + f"v_mfma_f32_16x16x32_bf16 v[{32+4*i}:{35+4*i}], {nm}, v[{b}:{b+3}], v[{32+4*i}:{35+4*i}]")
            pre = ""
        if ks + 2 < 18:
            vstream[-1] += f"\nds_read_b128 v[{b}:{b+3}], v2 offset:{(ks+2)*512}"
    sm = []
    TT = [60, 61, 62, 63, 4, 15]
    for i in range(0, 12, 2): sm.append(f"v_cvt_pk_bf16_f32 v{TT[i>>1]}, v{48+i}, v{49+i}")
    for i in range(0, 12, 2):
        sm.append(f"v_lshlrev_b32 v{48+i}, 16, v{TT[i>>1]}"); sm.append(f"v_and_b32 v{49+i}, 0xffff0000, v{TT[i>>1]}")
    for i in range(12): sm.append(f"v_mul_f32 v{48+i}, s44, v{48+i}")
    for i in range(0, 12, 2): sm.append(f"v_cvt_pk_bf16_f32 v{TT[i>>1]}, v{48+i}, v{49+i}")
    for i in range(0, 12, 2):
        sm.append(f"v_lshlrev_b32 v{48+i}, 16, v{TT[i>>1]}"); sm.append(f"v_and_b32 v{49+i}, 0xffff0000, v{TT[i>>1]}")
    sm.append("v_mov_b32 v4, 0xff800000")
    for i in range(4): sm.append(f"v_cndmask_b32 v{48+i}, v{48+i}, v4, s[42:43]")
    sm += ["v_max3_f32 v60, v48, v49, v50", "v_max3_f32 v61, v51, v52, v53", "v_max3_f32 v62, v54, v55, v56",
           "v_max3_f32 v63, v57, v58, v59", "v_max3_f32 v60, v60, v61, v62", "v_max_f32 v60, v60, v63"]
    def xred(op, r, t):
        return [f"v_mov_b32 v{t}, v{r}\ns_nop 1\nv_permlane32_swap_b32 v{r}, v{t}", f"{op} v{r}, v{r}, v{t}",
                f"v_mov_b32 v{t}, v{r}\ns_nop 1\nv_permlane16_swap_b32 v{r}, v{t}", f"{op} v{r}, v{r}, v{t}"]
    sm += xred("v_max_f32", 60, 61)
    sm.append("v_mul_f32 v60, s45, v60")
    for i in range(12): sm.append(f"v_fma_f32 v{48+i}, v{48+i}, s45, -v60")
    for i in range(12): sm.append(f"v_exp_f32 v{48+i}, v{48+i}")
    sm.append("s_nop 0")
    sm += ["v_add_f32 v60, v48, v49", "v_add_f32 v61, v50, v51", "v_add_f32 v62, v52, v53", "v_add_f32 v63, v54, v55",
           "v_add_f32 v4, v56, v57", "v_add_f32 v15, v58, v59", "v_add_f32 v60, v60, v61", "v_add_f32 v62, v62, v63",
           "v_add_f32 v4, v4, v15", "v_add_f32 v60, v60, v62", "v_add_f32 v60, v60, v4"]
    sm += xred("v_add_f32", 60, 61)
    sm.append("v_rcp_f32 v61, v60\ns_nop 0")
    for i in range(12): sm.append(f"v_mul_f32 v{48+i}, v{48+i}, v61")
    sm += ["v_cvt_pk_bf16_f32 v22, v48, v49", "v_cvt_pk_bf16_f32 v23, v50, v51", "v_cvt_pk_bf16_f32 v60, v52, v53",
           "v_cvt_pk_bf16_f32 v61, v54, v55", "v_cvt_pk_bf16_f32 v62, v56, v57", "v_cvt_pk_bf16_f32 v63, v58, v59"]
    for x in vstream[:10]: k(x)
    vs = vstream[10:]
    n, m = len(sm), len(vs); j = 0
    for i, x in enumerate(sm):
        k(x)
        tgt = min(m, (i + 1) * m // (n - 12))
        while j < tgt: k(vs[j]); j += 1
    while j < m: k(vs[j]); j += 1
    Lvj = k.label("vj")
    k(f"s_branch {Lvj}")
    k(f"{Lvonly}:")
    for x in vstream: k(x)
    k(f"{Lvj}:")
    k("s_mov_b64 exec, s[40:41]")
    k("s_nop 6")
    for i in range(2):
        k(f"v_cvt_pk_bf16_f32 v{40+2*i}, v{32+4*i}, v{33+4*i}")
        k(f"v_cvt_pk_bf16_f32 v{41+2*i}, v{34+4*i}, v{35+4*i}")
        k(f"ds_write_b64 v5, v[{40+2*i}:{41+2*i}] offset:{i*32}")
    for i in range(2):
        k(f"buffer_store_dwordx2 v[{40+2*i}:{41+2*i}], v12, s[28:31], s51 offen offset:{i*32}{SC}")
    k("s_mov_b64 exec, -1")
    k(f"s_cmp_eq_u32 s46, {last}")
    k(f"s_cbranch_scc1 {Lfin}")
    for i in range(8): k(f"v_mov_b32 v{32+i}, 0")
    k("s_waitcnt lgkmcnt(0)")
    k("s_barrier")
    stamp(4)
    for e2 in range(2):
        k(f"s_add_u32 s53, s52, {e2*32}")
        k("v_add_u32 v4, s53, v9")
        k(f"ds_read_b64_tr_b16 v[{20+8*e2}:{21+8*e2}], v4")
    for e2 in range(2):
        k(f"v_mfma_f32_16x16x32_bf16 v[{32+4*e2}:{35+4*e2}], v[{16+8*e2}:{19+8*e2}], v[60:63], v[{32+4*e2}:{35+4*e2}]")
    k("v_add_u32 v44, s52, v6")
    k("s_waitcnt lgkmcnt(0)")
    k("s_nop 4")
    for e2 in range(2):
        k(f"v_mfma_f32_16x16x16_bf16 v[{32+4*e2}:{35+4*e2}], v[{20+8*e2}:{21+8*e2}], v[22:23], v[{32+4*e2}:{35+4*e2}]")
    NB = 4
    lds_seq = [(ct, j) for ct in range(8) for j in range(4)]
    def issue(idx):
        ct, j = lds_seq[idx]
        b = 48 + 4*(idx % NB)
        k(f"ds_read_b128 v[{b}:{b+3}], v10 offset:{(ct*4+j)*1024}")
    issued = 0
    for p in range(NB): issue(p); issued += 1
    k("s_nop 3")
    k("v_cvt_pk_bf16_f32 v40, v32, v33"); k("v_cvt_pk_bf16_f32 v41, v34, v35")
    k("v_cvt_pk_bf16_f32 v42, v36, v37"); k("v_cvt_pk_bf16_f32 v43, v38, v39")
    k("s_mov_b64 exec, s[40:41]")
    k("ds_write_b128 v44, v[40:43]")
    k("s_mov_b64 exec, -1")
    for i in range(12): k(f"v_mov_b32 v{32+i}, 0") if i < 8 else None
    k("s_waitcnt lgkmcnt(0)")
    k("s_barrier")
    stamp(5)
    for j in range(4):
        k(f"ds_read_b128 v[{16+4*j}:{19+4*j}], v6 offset:{j*64}")
    k("s_add_u32 s53, s46, 1")
    kv_dma("s53")
    k("s_mul_i32 s47, s46, 32")
    k(f"s_add_u32 s47, s47, {role_sreg}")
    k("s_mul_i32 s47, s47, 18432")
    for i in range(4): k(f"v_mov_b32 v{40+i}, 0")
    order = [8] + list(range(8))
    used = 0; pend = None
    def dual(fmt):
        La = k.label("da"); Lb = k.label("db")
        k("s_cmp_eq_u32 s59, 1")
        k(f"s_cbranch_scc1 {La}")
        k(fmt + " sc1")
        k(f"s_branch {Lb}")
        k(f"{La}:")
        k(fmt)
        k(f"{Lb}:")
    def store_tile(ct, a):
        k("s_mov_b64 exec, s[40:41]")
        if ct == 8:
            k("s_add_u32 s50, s47, 4096")
            dual(f"buffer_store_dwordx4 v[{a}:{a+3}], v11, s[16:19], s50 offen")
        else:
            dual(f"buffer_store_dwordx4 v[{a}:{a+3}], v11, s[16:19], s47 offen offset:{ct*512}")
        k("s_mov_b64 exec, -1")
    for n, ct in enumerate(order):
        a = 32 + 4*(n % 3)
        if n >= 3:
            for i in range(4): k(f"v_mov_b32 v{a+i}, 0")
            k("s_nop 1")
        for j in range(4):
            if ct == 8:
                if j == 0: k("s_waitcnt lgkmcnt(0)")
                k(f"v_mfma_f32_16x16x32_bf16 v[{a}:{a+3}], v[{64+4*j}:{67+4*j}], v[{16+4*j}:{19+4*j}], v[{a}:{a+3}]")
            else:
                k(f"s_waitcnt lgkmcnt({issued - used - 1})")
                b = 48 + 4*(used % NB)
                k(f"v_mfma_f32_16x16x32_bf16 v[{a}:{a+3}], v[{b}:{b+3}], v[{16+4*j}:{19+4*j}], v[{a}:{a+3}]")
                used += 1
                if issued < len(lds_seq): issue(issued); issued += 1
        if pend is not None: store_tile(*pend)
        pend = (ct, a)
    k("s_nop 7")
    store_tile(*pend)
    stamp(6)
    k("v_lshrrev_b32 v60, 7, v13")
    k("v_lshrrev_b32 v61, 4, v13")
    k("v_and_b32 v61, 7, v61")
    k("v_mul_u32_u24 v62, 18432, v60")
    k("v_lshl_add_u32 v62, v61, 4, v62")
    k(f"s_mul_i32 s47, s46, {32*18432}")
    k("s_lshl_b32 s48, s14, 7")
    k("s_add_u32 s47, s47, s48")
    k(f"s_add_u32 s51, {role_sreg}, 32")
    k(f"s_cmp_lt_u32 {role_sreg}, 4")
    k(f"s_cselect_b32 s51, s51, {role_sreg}")
    k(f"s_lshl_b32 s48, {role_sreg}, 9")
    k("s_add_u32 s48, s48, s47")
    k("s_lshl_b32 s50, s51, 9")
    k("s_add_u32 s50, s50, s47")
    k("s_mov_b32 s49, 0")
    Lrp = k.label("rp"); Lrd = k.label("rd")
    k(f"{Lrp}:")
    for T, base in ((0, "s48"), (1, "s50")):
        for i in range(4):
            k(f"s_add_u32 s52, {base}, {i*8*18432}")
            k(f"buffer_load_dwordx4 v[{16+16*T+4*i}:{19+16*T+4*i}], v62, s[16:19], s52 offen sc1")
    k("s_waitcnt vmcnt(0)")
    for T in range(2):
        b = 16 + 16*T; d = 48 + 4*T
        for r in range(4):
            k(f"v_add_f32 v{d+r}, v{b+r}, v{b+4+r}")
            k(f"v_add_f32 v{b+8+r}, v{b+8+r}, v{b+12+r}")
        for r in range(4):
            k(f"v_add_f32 v{d+r}, v{d+r}, v{b+8+r}")
    k("v_add_f32 v56, v48, v49"); k("v_add_f32 v57, v50, v51")
    k("v_add_f32 v58, v52, v53"); k("v_add_f32 v59, v54, v55")
    k("v_add_f32 v56, v56, v57"); k("v_add_f32 v58, v58, v59")
    k("v_cmp_u_f32 vcc, v56, v58")
    k(f"s_cbranch_vccz {Lrd}")
    k("s_add_u32 s49, s49, 1")
    k(f"s_cmp_lt_u32 s49, {POLL_LIMIT}")
    k(f"s_cbranch_scc1 {Lrp}")
    k(f"{Lrd}:")
    for r in range(8): k(f"v_mov_b32 v{16+r}, v{48+r}")
    k("s_nop 0")
    for r in range(8): k(f"v_permlane32_swap_b32 v{48+r}, v{16+r}")
    for r in range(8): k(f"v_add_f32 v{48+r}, v{48+r}, v{16+r}")
    for r in range(8): k(f"v_mov_b32 v{16+r}, v{48+r}")
    k("s_nop 0")
    for r in range(8): k(f"v_permlane16_swap_b32 v{48+r}, v{16+r}")
    for r in range(8): k(f"v_add_f32 v{48+r}, v{48+r}, v{16+r}")
    k("s_nop 1")
    for r in range(8): k(f"v_add_f32_dpp v{48+r}, v{48+r}, v{48+r} row_ror:8 row_mask:0xf bank_mask:0xf")
    for T in range(2):
        k(f"v_cvt_pk_bf16_f32 v{16+2*T}, v{48+4*T}, v{49+4*T}")
        k(f"v_cvt_pk_bf16_f32 v{17+2*T}, v{50+4*T}, v{51+4*T}")
    for r in range(4): k(f"v_min_u32 v{16+r}, 0xfffffffe, v{16+r}")
    k("v_lshlrev_b32 v61, 3, v61")
    k("s_add_u32 s48, s46, 1")
    k("s_mul_i32 s48, s48, 9216")
    k("s_lshl_b32 s52, s14, 6")
    k("s_add_u32 s48, s48, s52")
    k("s_lshl_b32 s50, s51, 8"); k("s_add_u32 s50, s50, s48")
    k(f"s_lshl_b32 s52, {role_sreg}, 8"); k("s_add_u32 s48, s48, s52")
    k("s_mov_b64 exec, 0xff")
    dual("buffer_store_dwordx2 v[16:17], v61, s[20:23], s48 offen")
    dual("buffer_store_dwordx2 v[18:19], v61, s[20:23], s50 offen")
    k("s_mov_b64 exec, -1")
    stamp(7)
    flush(8, 62)
    k("s_add_u32 s46, s46, 1")
    k(f"s_branch {Lstep}")
    k(f"{Lfin}:")
    if mega:
        k("s_waitcnt vmcnt(0)")
        k("s_barrier")
        kvm_signal("s46")
    k(f"s_branch {Lend}")
```

```python
from asmlib import K
from layout import *

NMODWG = 27
NFILLWG = 512

def k_zero():
    k = K("zero_kernel")
    k.vgpr = 16; k.accum = 16; k.sgpr = 24
    Lend = k.label("end")
    k("s_cmp_ge_u32 s2, 1")
    k(f"s_cbranch_scc1 {Lend}")
    k(f"s_load_dwordx2 s[8:9], s[0:1], {KA['ws']}")
    k("s_waitcnt lgkmcnt(0)")
    k.srd_off(12, 8, 9, OFF_CNT, NCNT*64)
    k("v_lshlrev_b32 v1, 6, v0")
    k("v_mov_b32 v4, 0"); k("v_mov_b32 v5, 0"); k("v_mov_b32 v6, 0"); k("v_mov_b32 v7, 0")
    for i in range(4):
        k(f"buffer_store_dwordx4 v[4:7], v1, s[12:15], 0 offen offset:{16*i}")
    k(f"{Lend}:")
    return k

NFILLT = FILL_BYTES // (512*1024)
def fill_body(k):
    k(f"s_load_dwordx2 s[8:9], s[0:1], {KA['ws']}")
    k("s_waitcnt lgkmcnt(0)")
    k.srd_off(12, 8, 9, OFF_PART, FILL_BYTES)
    k("s_lshl_b32 s24, s2, 19")
    k("v_lshlrev_b32 v1, 4, v0")
    k("v_mov_b32 v4, -1"); k("v_mov_b32 v5, -1"); k("v_mov_b32 v6, -1"); k("v_mov_b32 v7, -1")
    k("s_mov_b32 s25, 0")
    L = k.label("fl")
    k(f"{L}:")
    for i in range(8):
        k("buffer_store_dwordx4 v[4:7], v1, s[12:15], s24 offen sc1")
        k("s_add_u32 s24, s24, 4096")
    k("s_add_u32 s25, s25, 1")
    k("s_cmp_lt_u32 s25, 16")
    k(f"s_cbranch_scc1 {L}")

def k_mod(k=None, sc=""):
    embedded = k is not None
    if not embedded:
        k = K("mod_kernel")
        k.vgpr = 96; k.accum = 96; k.sgpr = 48
    k(f"s_load_dwordx2 s[4:5], s[0:1], {KA['c']}")
    k(f"s_load_dwordx2 s[6:7], s[0:1], {KA['wmod']}")
    k(f"s_load_dwordx2 s[8:9], s[0:1], {KA['ws']}")
    k("s_waitcnt lgkmcnt(0)")
    Lfill = k.label("fill"); Lend = k.label("end")
    if not embedded:
        k(f"s_cmp_ge_u32 s2, {NMODWG}")
        k(f"s_cbranch_scc1 {Lfill}")
    k.srd(12, 4, 5, 576*2)
    k.srd(16, 6, 7, 576*3456*2)
    k.srd_off(20, 8, 9, OFF_MOD, 6*576*4)
    k("v_lshrrev_b32 v1, 6, v0")
    k("v_and_b32 v2, 63, v0")
    k("s_nop 0")
    k("v_readfirstlane_b32 s24, v1")
    k("s_mul_i32 s25, s24, 144")
    k("v_add_u32 v3, s25, v2")
    k("v_lshlrev_b32 v3, 1, v3")
    k("buffer_load_ushort v10, v3, s[12:15], 0 offen")
    k("buffer_load_ushort v11, v3, s[12:15], 0 offen offset:128")
    k("buffer_load_ushort v12, v3, s[12:15], 0 offen offset:256")
    k("s_lshl_b32 s26, s2, 8")
    k("v_lshl_add_u32 v4, v2, 2, s26")
    k("s_mul_i32 s27, s25, 6912")
    k("s_waitcnt vmcnt(0)")
    k("s_mov_b32 s30, 0xbfb8aa3b")
    for r in (10, 11, 12):
        k(f"v_lshlrev_b32 v{r}, 16, v{r}")
        k(f"v_mul_f32 v5, s30, v{r}")
        k("v_exp_f32 v5, v5")
        k("s_nop 0")
        k("v_add_f32 v5, 1.0, v5")
        k("v_rcp_f32 v6, v5")
        k("s_nop 0")
        k(f"v_mul_f32 v7, v{r}, v6")
        k(f"v_fma_f32 v8, -v7, v5, v{r}")
        k("v_fma_f32 v7, v8, v6, v7")
        k("v_cvt_pk_bf16_f32 v7, v7, v7")
        k(f"v_lshlrev_b32 v{r}, 16, v7")
    k("v_mov_b32 v20, 0")
    k("v_mov_b32 v21, 0")
    B = 144 if embedded else 48
    for b0 in range(0, 144, B):
        for i in range(B):
            r = b0 + i
            k(f"s_add_u32 s28, s27, {r*6912}")
            k(f"buffer_load_dword v{32+i}, v4, s[16:19], s28 offen")
        for i in range(B):
            r = b0 + i
            k(f"v_readlane_b32 s29, v{10 + r//64}, {r%64}")
            if i == 0:
                k("s_waitcnt vmcnt(0)")
            k(f"v_lshlrev_b32 v22, 16, v{32+i}")
            k(f"v_and_b32 v23, 0xffff0000, v{32+i}")
            k("v_fmac_f32 v20, s29, v22")
            k("v_fmac_f32 v21, s29, v23")
    k("v_lshlrev_b32 v5, 3, v0")
    k("ds_write_b64 v5, v[20:21]")
    k("s_waitcnt lgkmcnt(0)")
    k("s_barrier")
    k("s_cmp_lg_u32 s24, 0")
    k(f"s_cbranch_scc1 {Lend}")
    k("ds_read_b64 v[24:25], v5 offset:512")
    k("ds_read_b64 v[26:27], v5 offset:1024")
    k("ds_read_b64 v[28:29], v5 offset:1536")
    k("s_waitcnt lgkmcnt(0)")
    k("v_add_f32 v20, v20, v24"); k("v_add_f32 v21, v21, v25")
    k("v_add_f32 v26, v26, v28"); k("v_add_f32 v27, v27, v29")
    k("v_add_f32 v20, v20, v26"); k("v_add_f32 v21, v21, v27")
    k("v_cvt_pk_bf16_f32 v22, v20, v21")
    k("v_lshlrev_b32 v20, 16, v22")
    k("v_and_b32 v21, 0xffff0000, v22")
    k("v_lshrrev_b32 v6, 1, v4")
    k("v_add_f32 v24, 1.0, v20"); k("v_add_f32 v25, 1.0, v21")
    k("v_cvt_pk_bf16_f32 v22, v24, v25")
    k("v_lshlrev_b32 v24, 16, v22")
    k("v_and_b32 v25, 0xffff0000, v22")
    k("v_subrev_u32 v7, 576, v6")
    k("v_cmp_gt_u32 s[32:33], 576, v7") if False else None
    k("s_movk_i32 s34, 576")
    k("v_cmp_gt_u32 s[32:33], s34, v7")
    k("v_subrev_u32 v7, 2304, v6")
    k("v_cmp_gt_u32 s[36:37], s34, v7")
    k("s_nop 1")
    k("s_or_b64 s[32:33], s[32:33], s[36:37]")
    k("v_cndmask_b32 v20, v20, v24, s[32:33]")
    k("v_cndmask_b32 v21, v21, v25, s[32:33]")
    k("v_lshlrev_b32 v6, 2, v6")
    k(f"buffer_store_dwordx2 v[20:21], v6, s[20:23], 0 offen{sc}")
    if embedded:
        k(f"{Lend}:")
        return k
    k(f"s_branch {Lend}")
    k(f"{Lfill}:")
    k(f"s_cmp_gt_u32 s2, {NMODWG + NFILLWG}")
    k(f"s_cbranch_scc1 {Lend}")
    Lf2 = k.label("f2")
    k(f"s_cmp_lg_u32 s2, {NMODWG + NFILLWG}")
    k(f"s_cbranch_scc1 {Lf2}")
    k.srd_off(12, 8, 9, OFF_CNT, 160*64)
    k("v_lshlrev_b32 v1, 6, v0")
    k("v_mov_b32 v4, 0"); k("v_mov_b32 v5, 0"); k("v_mov_b32 v6, 0"); k("v_mov_b32 v7, 0")
    k("buffer_store_dwordx4 v[4:7], v1, s[12:15], 0 offen")
    k("buffer_store_dwordx4 v[4:7], v1, s[12:15], 0 offen offset:16")
    k("buffer_store_dwordx4 v[4:7], v1, s[12:15], 0 offen offset:32")
    k("buffer_store_dwordx4 v[4:7], v1, s[12:15], 0 offen offset:48")
    k(f"s_branch {Lend}")
    k(f"{Lf2}:")
    k.srd_off(12, 8, 9, OFF_PART, FILL_BYTES)
    k(f"s_sub_u32 s24, s2, {NMODWG}")
    k("s_lshl_b32 s24, s24, 12")
    k("v_lshl_add_u32 v1, v0, 4, s24")
    k("v_mov_b32 v4, -1"); k("v_mov_b32 v5, -1"); k("v_mov_b32 v6, -1"); k("v_mov_b32 v7, -1")
    for i in range(FILL_BYTES // (2*MB)):
        k(f"s_mov_b32 s25, {i*2*MB}")
        k("buffer_store_dwordx4 v[4:7], v1, s[12:15], s25 offen")
    k(f"{Lend}:")
    return k

def ln_core(k, xr, modsrd, sh_off, sc_off, voff_col, outs):
    MS = 100
    MH = 172
    k(f"s_mov_b32 s41, {sc_off}")
    k(f"s_mov_b32 s42, {sh_off}")
    for i in range(9):
        for hh in range(2):
            k(f"buffer_load_dwordx4 v[{MS+i*8+hh*4}:{MS+i*8+hh*4+3}], {voff_col}, s[{modsrd}:{modsrd+3}], s41 offen offset:{i*256 + hh*16}")
            k(f"buffer_load_dwordx4 v[{MH+i*8+hh*4}:{MH+i*8+hh*4+3}], {voff_col}, s[{modsrd}:{modsrd+3}], s42 offen offset:{i*256 + hh*16}")
    T = 244
    k(f"v_mov_b32 v{T}, 0"); k(f"v_mov_b32 v{T+1}, 0")
    for j in range(36):
        k(f"v_lshlrev_b32 v{T+2}, 16, v{xr+j}")
        k(f"v_and_b32 v{T+3}, 0xffff0000, v{xr+j}")
        k(f"v_add_f32 v{T}, v{T}, v{T+2}")
        k(f"v_add_f32 v{T+1}, v{T+1}, v{T+3}")
    k(f"v_add_f32 v{T}, v{T}, v{T+1}")
    def red8(r, t):
        for off in (0x041F, 0x081F, 0x101F):
            k(f"ds_swizzle_b32 v{t}, v{r} offset:{off}")
            k("s_waitcnt lgkmcnt(0)")
            k(f"v_add_f32 v{r}, v{r}, v{t}")
    red8(T, T+2)
    k(f"s_mov_b32 s40, 0x{0x3ae38e39:08x}")
    k(f"v_mul_f32 v{T}, s40, v{T}")
    k(f"v_mov_b32 v{T+1}, 0"); k(f"v_mov_b32 v{T+4}, 0")
    for j in range(36):
        k(f"v_lshlrev_b32 v{T+2}, 16, v{xr+j}")
        k(f"v_and_b32 v{T+3}, 0xffff0000, v{xr+j}")
        k(f"v_sub_f32 v{T+2}, v{T+2}, v{T}")
        k(f"v_sub_f32 v{T+3}, v{T+3}, v{T}")
        k(f"v_fmac_f32 v{T+1}, v{T+2}, v{T+2}")
        k(f"v_fmac_f32 v{T+4}, v{T+3}, v{T+3}")
    k(f"v_add_f32 v{T+1}, v{T+1}, v{T+4}")
    red8(T+1, T+2)
    k(f"v_mul_f32 v{T+1}, s40, v{T+1}")
    k(f"v_cvt_pk_bf16_f32 v{T+2}, v{T}, v{T+1}")
    k(f"v_lshlrev_b32 v{T}, 16, v{T+2}")
    k(f"v_and_b32 v{T+1}, 0xffff0000, v{T+2}")
    k(f"v_add_f32 v{T+1}, 0x3727c5ac, v{T+1}")
    k(f"v_cvt_pk_bf16_f32 v{T+2}, v{T+1}, v{T+1}")
    k(f"v_lshlrev_b32 v{T+1}, 16, v{T+2}")
    k(f"v_sqrt_f32 v{T+1}, v{T+1}")
    k("s_nop 0")
    k(f"v_cvt_pk_bf16_f32 v{T+2}, v{T+1}, v{T+1}")
    k(f"v_lshlrev_b32 v{T+1}, 16, v{T+2}")
    k(f"v_rcp_f32 v{T+4}, v{T+1}")
    k("s_waitcnt vmcnt(0)")
    for j in range(36):
        a, b = T+2, T+3
        k(f"v_lshlrev_b32 v{a}, 16, v{xr+j}")
        k(f"v_and_b32 v{b}, 0xffff0000, v{xr+j}")
        k(f"v_sub_f32 v{a}, v{a}, v{T}")
        k(f"v_sub_f32 v{b}, v{b}, v{T}")
        k(f"v_cvt_pk_bf16_f32 v{T+5}, v{a}, v{b}")
        k(f"v_lshlrev_b32 v{a}, 16, v{T+5}")
        k(f"v_and_b32 v{b}, 0xffff0000, v{T+5}")
        k(f"v_mul_f32 v{T+6}, v{a}, v{T+4}")
        k(f"v_mul_f32 v{T+7}, v{b}, v{T+4}")
        k(f"v_fma_f32 v{T+8}, -v{T+6}, v{T+1}, v{a}")
        k(f"v_fma_f32 v{T+9}, -v{T+7}, v{T+1}, v{b}")
        k(f"v_fma_f32 v{T+6}, v{T+8}, v{T+4}, v{T+6}")
        k(f"v_fma_f32 v{T+7}, v{T+9}, v{T+4}, v{T+7}")
        k(f"v_cvt_pk_bf16_f32 v{T+5}, v{T+6}, v{T+7}")
        k(f"v_lshlrev_b32 v{a}, 16, v{T+5}")
        k(f"v_and_b32 v{b}, 0xffff0000, v{T+5}")
        k(f"v_mul_f32 v{a}, v{a}, v{MS+2*j}")
        k(f"v_mul_f32 v{b}, v{b}, v{MS+2*j+1}")
        k(f"v_cvt_pk_bf16_f32 v{T+5}, v{a}, v{b}")
        k(f"v_lshlrev_b32 v{a}, 16, v{T+5}")
        k(f"v_and_b32 v{b}, 0xffff0000, v{T+5}")
        k(f"v_add_f32 v{a}, v{a}, v{MH+2*j}")
        k(f"v_add_f32 v{b}, v{b}, v{MH+2*j+1}")
        k(f"v_cvt_pk_bf16_f32 v{xr+j}, v{a}, v{b}")

def k_ln1(k=None, sc=""):
    embedded = k is not None
    if not embedded:
        k = K("ln1_kernel")
        k.sgpr = 48
        Lend = k.label("end")
        k("s_cmp_ge_u32 s2, 64")
        k(f"s_cbranch_scc1 {Lend}")
    k(f"s_load_dwordx2 s[4:5], s[0:1], {KA['x']}")
    k(f"s_load_dwordx2 s[8:9], s[0:1], {KA['ws']}")
    k("s_waitcnt lgkmcnt(0)")
    k.srd(12, 4, 5, S*D*2)
    k.srd_off(16, 8, 9, OFF_MOD, 6*576*4)
    k.srd_off(20, 8, 9, OFF_H1, S*D*2)
    Lnc = k.label("nc")
    k("s_cmp_lg_u32 s2, 0")
    k(f"s_cbranch_scc1 {Lnc}")
    k(f"s_load_dwordx2 s[6:7], s[0:1], {KA['mem0']}")
    k("s_waitcnt lgkmcnt(0)")
    k.srd(24, 6, 7, 9216)
    k.srd_off(28, 8, 9, OFF_M0, 9216)
    k("s_mov_b32 s33, 58255")
    for i in range(3):
        k(f"v_add_u32 v1, {256*i}, v0")
        k("v_lshlrev_b32 v2, 4, v1")
        k(f"buffer_load_dwordx4 v[{8+4*i}:{11+4*i}], v2, s[24:27], 0 offen")
        k("v_mul_lo_u32 v3, v1, s33")
        k("v_lshrrev_b32 v3, 22, v3")
        k("v_mul_u32_u24 v4, 72, v3")
        k("v_sub_u32 v4, v1, v4")
        k("v_lshrrev_b32 v5, 1, v4")
        k("v_lshlrev_b32 v5, 8, v5")
        k("v_lshl_add_u32 v5, v3, 5, v5")
        k("v_and_b32 v4, 1, v4")
        k(f"v_lshl_add_u32 v{20+i}, v4, 4, v5")
    k("v_cmp_gt_u32 vcc, 64, v0")
    k("v_mov_b32 v6, 0x10000")
    k("v_cndmask_b32 v22, v6, v22, vcc")
    k("s_waitcnt vmcnt(0)")
    for i in range(3):
        k(f"buffer_store_dwordx4 v[{8+4*i}:{11+4*i}], v{20+i}, s[28:31], 0 offen{sc}")
    k("s_waitcnt vmcnt(0)")
    k(f"{Lnc}:")
    k("v_lshrrev_b32 v1, 3, v0")
    k("s_lshl_b32 s24, s2, 5")
    k("v_add_u32 v1, s24, v1")
    k("s_movk_i32 s25, 1152")
    k("v_mul_lo_u32 v1, v1, s25")
    k("v_and_b32 v2, 7, v0")
    k("v_lshl_add_u32 v1, v2, 4, v1")
    k("v_lshlrev_b32 v3, 5, v2")
    XR = 8
    for i in range(9):
        k(f"buffer_load_dwordx4 v[{XR+4*i}:{XR+4*i+3}], v1, s[12:15], 0 offen offset:{i*128}")
    k("s_waitcnt vmcnt(0)")
    ln_core(k, XR, 16, 0*576*4, 1*576*4, "v3", None)
    for i in range(9):
        k(f"buffer_store_dwordx4 v[{XR+4*i}:{XR+4*i+3}], v1, s[20:23], 0 offen offset:{i*128}{sc}")
    if not embedded: k(f"{Lend}:")
    return k

def k_red_ln2(k=None, sc=""):
    embedded = k is not None
    if not embedded:
        k = K("ln2_kernel")
        k.sgpr = 48
        Lend = k.label("end")
        k("s_cmp_ge_u32 s2, 64")
        k(f"s_cbranch_scc1 {Lend}")
    k(f"s_load_dwordx2 s[4:5], s[0:1], {KA['x']}")
    k(f"s_load_dwordx2 s[8:9], s[0:1], {KA['ws']}")
    k("s_waitcnt lgkmcnt(0)")
    k.srd(12, 4, 5, S*D*2)
    k.srd_off(16, 8, 9, OFF_MOD, 6*576*4)
    k.srd_off(20, 8, 9, OFF_H2, S*D*2)
    k.srd_off(24, 8, 9, OFF_X2, S*D*2)
    k.srd_off(28, 8, 9, OFF_P1, 4*S*D*4)
    k("v_lshrrev_b32 v1, 3, v0")
    k("s_lshl_b32 s32, s2, 5")
    k("v_add_u32 v1, s32, v1")
    k("s_movk_i32 s33, 1152")
    k("v_mul_lo_u32 v4, v1, s33")
    k("v_and_b32 v2, 7, v0")
    k("v_lshl_add_u32 v1, v2, 4, v4")
    k("v_lshlrev_b32 v3, 5, v2")
    k("v_lshl_add_u32 v4, v4, 1, v3")
    XR = 8
    for i in range(9):
        k(f"buffer_load_dwordx4 v[{XR+4*i}:{XR+4*i+3}], v1, s[12:15], 0 offen offset:{i*128}")
    resid(k, XR, 2*576*4)
    for i in range(9):
        k(f"buffer_store_dwordx4 v[{XR+4*i}:{XR+4*i+3}], v1, s[24:27], 0 offen offset:{i*128}{sc}")
    ln_core(k, XR, 16, 3*576*4, 4*576*4, "v3", None)
    for i in range(9):
        k(f"buffer_store_dwordx4 v[{XR+4*i}:{XR+4*i+3}], v1, s[20:23], 0 offen offset:{i*128}{sc}")
    if not embedded: k(f"{Lend}:")
    return k

NSPLIT = 4
def resid(k, XR, gate_off):
    k(f"s_mov_b32 s41, {gate_off}")
    PER = NSPLIT*8 + 8
    G = (256 - 48) // PER
    for g0 in range(0, 9, G):
        grp = list(range(g0, min(9, g0 + G)))
        for gi, i in enumerate(grp):
            Pb = 48 + gi*PER
            for p in range(NSPLIT):
                k(f"s_mov_b32 s42, {p*S*D*4}")
                for hh in range(2):
                    k(f"buffer_load_dwordx4 v[{Pb+p*8+hh*4}:{Pb+p*8+hh*4+3}], v4, s[28:31], s42 offen offset:{i*256+hh*16}")
            for hh in range(2):
                k(f"buffer_load_dwordx4 v[{Pb+NSPLIT*8+hh*4}:{Pb+NSPLIT*8+hh*4+3}], v3, s[16:19], s41 offen offset:{i*256+hh*16}")
        for gi, i in enumerate(grp):
            Pb = 48 + gi*PER
            k(f"s_waitcnt vmcnt({(len(grp)-1-gi)*(2*NSPLIT+2)})")
            st = 1
            while st < NSPLIT:
                for p in range(0, NSPLIT, 2*st):
                    for e in range(8):
                        k(f"v_add_f32 v{Pb+p*8+e}, v{Pb+p*8+e}, v{Pb+(p+st)*8+e}")
                st *= 2
            GT = Pb + NSPLIT*8
            for e in range(0, 8, 2):
                a, b, t = Pb+e, Pb+e+1, Pb+8
                k(f"v_cvt_pk_bf16_f32 v{t}, v{a}, v{b}")
                k(f"v_lshlrev_b32 v{a}, 16, v{t}"); k(f"v_and_b32 v{b}, 0xffff0000, v{t}")
                k(f"v_mul_f32 v{a}, v{a}, v{GT+e}"); k(f"v_mul_f32 v{b}, v{b}, v{GT+e+1}")
                k(f"v_cvt_pk_bf16_f32 v{t}, v{a}, v{b}")
                k(f"v_lshlrev_b32 v{a}, 16, v{t}"); k(f"v_and_b32 v{b}, 0xffff0000, v{t}")
                x = XR + 4*i + e//2
                k(f"v_lshlrev_b32 v{t}, 16, v{x}"); k(f"v_and_b32 v{t+1}, 0xffff0000, v{x}")
                k(f"v_add_f32 v{a}, v{a}, v{t}"); k(f"v_add_f32 v{b}, v{b}, v{t+1}")
                k(f"v_cvt_pk_bf16_f32 v{x}, v{a}, v{b}")

def k_final(k=None):
    embedded = k is not None
    if not embedded:
        k = K("final_kernel")
        k.sgpr = 48
        Lend = k.label("end")
        k("s_cmp_ge_u32 s2, 64")
        k(f"s_cbranch_scc1 {Lend}")
    k(f"s_load_dwordx2 s[4:5], s[0:1], {KA['out']}")
    k(f"s_load_dwordx2 s[8:9], s[0:1], {KA['ws']}")
    k("s_waitcnt lgkmcnt(0)")
    k.srd(20, 4, 5, S*D*2)
    k.srd_off(16, 8, 9, OFF_MOD, 6*576*4)
    k.srd_off(12, 8, 9, OFF_X2, S*D*2)
    k.srd_off(28, 8, 9, OFF_P2, 4*S*D*4)
    k("v_lshrrev_b32 v1, 3, v0")
    k("s_lshl_b32 s32, s2, 5")
    k("v_add_u32 v1, s32, v1")
    k("s_movk_i32 s33, 1152")
    k("v_mul_lo_u32 v4, v1, s33")
    k("v_and_b32 v2, 7, v0")
    k("v_lshl_add_u32 v1, v2, 4, v4")
    k("v_lshlrev_b32 v3, 5, v2")
    k("v_lshl_add_u32 v4, v4, 1, v3")
    XR = 8
    for i in range(9):
        k(f"buffer_load_dwordx4 v[{XR+4*i}:{XR+4*i+3}], v1, s[12:15], 0 offen offset:{i*128}")
    resid(k, XR, 5*576*4)
    for i in range(9):
        k(f"buffer_store_dwordx4 v[{XR+4*i}:{XR+4*i+3}], v1, s[20:23], 0 offen offset:{i*128}")
    if not embedded: k(f"{Lend}:")
    return k
```

```python
MB = 1 << 20
S, D, H, DH, M, SEG, F = 2048, 576, 32, 128, 8, 32, 4608
NSEG = S // SEG
OFF_MOD  = 0
OFF_H1   = 1 * MB
OFF_QKV  = 4 * MB
OFF_KVM  = 56 * MB
OFF_OT   = 66 * MB
OFF_X2   = 84 * MB
OFF_H2   = 88 * MB
OFF_ACT  = 92 * MB
OFF_P1   = 112 * MB
OFF_PART = 136 * MB
PART_BYTES = 64 * 32 * 4608 * 4
OFF_MEM  = OFF_PART + PART_BYTES
MEM_BYTES = 64 * 9216
FILL_BYTES = 19 * 2 * MB
WS_BYTES = 256 * MB
KA = dict(x=0, mem0=8, Wq=16, Wk=24, Wv=32, Wo=40, seglen=48, Bx=56, wg=64, wu=72, wd=80, c=88, wmod=96, out=104, dbg=112, ws=120)
OFF_P2 = 204 * MB
OFF_CNT = 224 * MB
OFF_DBG = 200 * MB
assert OFF_PART + FILL_BYTES <= OFF_DBG and PART_BYTES + MEM_BYTES <= FILL_BYTES
OFF_M0 = OFF_PART + FILL_BYTES
NCNT = 192
XT_OFF = 160*64
```

```python
import sys, os
PROF = os.environ.get('PROF') == '1'
sys.path.insert(0, 'work')
from asmlib import build_file
from layout import *
import k_small, k_gemm, k_attn
import k_rec2 as k_rec
NAME = "adaLN_cond__memory_aug_recurrent_mem_tr__geglu_ffn__prompt"
ref = open(f"cdna_kernels/{NAME}.s.ref").read().split("\n")
hdr = []
for ln in ref:
    if ln.startswith("; @launch") or ln.startswith("; Override") or ln.startswith("; grid=ceil"):
        continue
    if not ln.startswith(";"):
        break
    hdr.append(ln)
header = "\n".join(hdr)
kernels = []; launches = []
def add(k, grid, block, lds):
    if k not in kernels: kernels.append(k)
    launches.append((k.name, grid, block, lds))
MEGA = os.environ.get('MEGA', '1') == '1'
if MEGA:
    import k_mega
    add(k_small.k_zero(), (1,1,1), (256,1,1), 0)
    add(k_mega.k_mega(prof=PROF), (256,1,1), (256,1,1), 163840)
else:
    g = k_gemm.gemm_kernel('gqkv_kernel', 'qkv'); add(g, (g.nwg,1,1), (256,1,1), g.lds)
    add(k_rec.k_rec(prof=PROF), (k_rec.NHEAD_WG + k_rec.NRED_WG,1,1), (256,1,1), k_rec.LDS_BYTES)
    a = k_attn.k_attn(); add(a, (512,1,1), (256,1,1), a.lds)
    g = k_gemm.gemm_kernel('gwo_kernel', 'wo'); add(g, (g.nwg,1,1), (256,1,1), g.lds)
    add(k_small.k_red_ln2(), (64,1,1), (256,1,1), 0)
    g = k_gemm.gemm_kernel('gup_kernel', 'up'); add(g, (g.nwg,1,1), (256,1,1), g.lds)
    g = k_gemm.gemm_kernel('gdown_kernel', 'down'); add(g, (g.nwg,1,1), (256,1,1), g.lds)
    add(k_small.k_final(), (64,1,1), (256,1,1), 0)
open(f"cdna_kernels/{NAME}.s", "w").write(build_file(header, launches, kernels))
print("written", len(launches), "launches")
```

```python
from asmlib import K
from layout import *


def gemm_kernel(name, kind, k=None, sc=""):
    embedded = k is not None
    if not embedded: k = K(name)
    mode = 'a' if kind in ('qkv', 'up') else 'b'
    if kind == 'qkv':
        NB, NKS, NST, lda, ldw = 48, 1, 9, 1152, 8192
    elif kind == 'up':
        NB, NKS, NST, lda, ldw = 36, 1, 9, 1152, 9216
    elif kind == 'wo':
        NB, NKS, NST, lda, ldw = 4, NSPL, 64//NSPL, 8192, 1152
    elif kind == 'down':
        NB, NKS, NST, lda, ldw = 4, NSPL, 72//NSPL, 9216, 1152
    NWG = 16 * NB * NKS
    TM, TN = (4, 8) if mode == 'a' else (2, 9)
    WBYTES = 32768 if mode == 'a' else 18432
    STG = 16384 + WBYTES
    if not embedded:
        k.lds = 3 * STG
        k.nwg = NWG
        k.vgpr = 256 + 128; k.accum = 256; k.sgpr = 64
        Lend = k.label("end")
        k(f"s_cmp_ge_u32 s2, {NWG}")
        k(f"s_cbranch_scc1 {Lend}")
    k(f"s_load_dwordx2 s[8:9], s[0:1], {KA['ws']}")
    if kind == 'qkv':
        k(f"s_load_dwordx4 s[4:7], s[0:1], {KA['Wq']}")
        k(f"s_load_dwordx2 s[10:11], s[0:1], {KA['Wv']}")
    elif kind == 'up':
        k(f"s_load_dwordx4 s[4:7], s[0:1], {KA['wg']}")
    elif kind == 'wo':
        k(f"s_load_dwordx2 s[4:5], s[0:1], {KA['Wo']}")
    elif kind == 'down':
        k(f"s_load_dwordx2 s[4:5], s[0:1], {KA['wd']}")
    magic = (1 << 32) // NB + 1
    k(f"s_mov_b32 s43, {magic}")
    k("s_mul_hi_u32 s45, s2, s43")
    k(f"s_mul_i32 s44, s45, {NB}")
    k("s_sub_u32 s44, s2, s44")
    if NKS > 1:
        k(f"s_and_b32 s46, s45, {NKS-1}")
        k(f"s_lshr_b32 s45, s45, {NKS.bit_length()-1}")
    else:
        k("s_mov_b32 s46, 0")
    k("s_waitcnt lgkmcnt(0)")
    if kind == 'qkv':
        k.srd_off(12, 8, 9, OFF_H1, S*D*2)
        k("s_lshr_b32 s47, s44, 4")
        k("s_cmp_eq_u32 s47, 1")
        k("s_cselect_b32 s4, s6, s4"); k("s_cselect_b32 s5, s7, s5")
        k("s_cmp_eq_u32 s47, 2")
        k("s_cselect_b32 s4, s10, s4"); k("s_cselect_b32 s5, s11, s5")
        k.srd(16, 4, 5, 576*4096*2)
        k.srd(20, 4, 5, 576*4096*2)
        k.srd_off(24, 8, 9, OFF_QKV, S*12288*2)
        k("s_and_b32 s48, s44, 15"); k("s_lshl_b32 s48, s48, 9")
        k("s_add_u32 s49, s48, 256")
        k("s_lshl_b32 s50, s44, 9")
    elif kind == 'up':
        k.srd_off(12, 8, 9, OFF_H2, S*D*2)
        k.srd(16, 4, 5, 576*F*2)
        k.srd(20, 6, 7, 576*F*2)
        k.srd_off(24, 8, 9, OFF_ACT, S*F*2)
        k("s_lshl_b32 s48, s44, 8"); k("s_mov_b32 s49, s48"); k("s_mov_b32 s50, s48")
    else:
        k.srd_off(12, 8, 9, OFF_OT if kind == 'wo' else OFF_ACT, S*(4096 if kind == 'wo' else F)*2)
        k.srd(16, 4, 5, (4096 if kind == 'wo' else F)*576*2)
        k.srd_off(24, 8, 9, OFF_P1 if kind == 'wo' else OFF_P2, NSPL*S*D*4)
        k("s_mul_i32 s48, s44, 288")
        k("s_mul_i32 s50, s44, 576")
    k(f"s_mul_i32 s51, s46, {NST*64*2}")
    k(f"s_mul_i32 s52, s46, {NST*64*ldw}")
    k(f"s_mul_i32 s53, s45, {128*lda}")
    k("s_add_u32 s53, s53, s51")
    k("s_add_u32 s48, s48, s52")
    if mode == 'a':
        k("s_add_u32 s49, s49, s52")
    k("v_and_b32 v1, 63, v0")
    k("v_lshrrev_b32 v2, 6, v0")
    k("s_nop 0")
    k("v_readfirstlane_b32 s54, v2")
    k("v_lshrrev_b32 v3, 4, v1")
    k("v_and_b32 v4, 15, v1")
    k("v_lshrrev_b32 v5, 3, v1")
    k(f"s_movk_i32 s55, {lda}") if lda < 32768 else k(f"s_mov_b32 s55, {lda}")
    k("v_mul_lo_u32 v5, v5, s55")
    k("v_and_b32 v6, 7, v1")
    for par in range(2):
        k(f"v_add_u32 v7, {4*par}, v3")
        k("v_and_b32 v7, 7, v7")
        k("v_xor_b32 v7, v7, v6")
        k(f"v_lshl_add_u32 v{8+par}, v7, 4, v5")
    k(f"s_mul_i32 s56, s54, {32*lda}")
    k("s_add_u32 s53, s53, s56")
    k(f"s_mov_b32 s57, {ldw}")
    if mode == 'a':
        k("v_mul_lo_u32 v5, v3, s57")
        k("v_lshrrev_b32 v6, 1, v4")
        for var in range(2):
            k(f"v_or_b32 v7, {var<<2}, v3")
            k("v_xor_b32 v7, v7, v6")
            k("v_lshlrev_b32 v7, 1, v7")
            k("v_and_b32 v12, 1, v1")
            k("v_or_b32 v7, v7, v12")
            k(f"v_lshl_add_u32 v{10+var}, v7, 4, v5")
        k("s_lshr_b32 s58, s54, 1")
        k("s_and_b32 s59, s54, 1")
        k("s_cmp_eq_u32 s58, 1")
        k("s_cselect_b32 s28, s20, s16"); k("s_cselect_b32 s29, s21, s17")
        k("s_mov_b32 s30, s18"); k("s_mov_b32 s31, s19")
        k("s_cselect_b32 s60, s49, s48")
        k(f"s_mul_i32 s61, s59, {32*ldw}")
        k("s_add_u32 s60, s60, s61")
        k("s_lshl_b32 s61, s58, 14"); k("s_lshl_b32 s62, s59, 13")
        k("s_add_u32 s61, s61, s62"); k("s_add_u32 s61, s61, 16384")
        NWD = 8
    else:
        k("s_mov_b32 s62, 0xe38f")
        for j in range(5):
            if j < 4:
                k(f"s_add_u32 s58, s54, {4*j}")
            else:
                k("s_and_b32 s58, s54, 1"); k("s_add_u32 s58, s58, 16")
            k("s_lshl_b32 s58, s58, 6")
            k("v_add_u32 v5, s58, v1")
            k("v_mul_lo_u32 v6, v5, s62")
            k("v_lshrrev_b32 v6, 20, v6")
            k("v_mul_u32_u24 v7, 18, v6")
            k("v_sub_u32 v7, v5, v7")
            k("v_mul_lo_u32 v6, v6, s57")
            k(f"v_lshl_add_u32 v{10+j}, v7, 4, v6")
        k("s_mov_b32 s28, s16"); k("s_mov_b32 s29, s17"); k("s_mov_b32 s30, s18"); k("s_mov_b32 s31, s19")
        k("s_mov_b32 s60, s48")
        NWD = 5
    k("s_lshl_b32 s62, s54, 12")
    NDMA = 4 + NWD
    def dma_stage(st):
        buf = (st % 3) * STG
        out = []
        for i in range(4):
            out.append(f"s_add_u32 s63, s53, {st*128 + i*8*lda}\ns_add_u32 m0, s62, {buf + i*1024}\ns_nop 0\nbuffer_load_dwordx4 v{8+(i&1)}, s[12:15], s63 offen lds")
        if mode == 'a':
            for i in range(8):
                out.append(f"s_add_u32 s63, s60, {(st*64 + i*4)*ldw}\ns_add_u32 m0, s61, {buf + i*1024}\ns_nop 0\nbuffer_load_dwordx4 v{10+((i>>1)&1)}, s[28:31], s63 offen lds")
        else:
            for j in range(5):
                if j < 4:
                    out.append(f"s_add_u32 s63, s60, {st*64*ldw}\ns_lshl_b32 m0, s54, 10\ns_add_u32 m0, m0, {buf + 16384 + j*4096}\ns_nop 0\nbuffer_load_dwordx4 v{10+j}, s[28:31], s63 offen lds")
                else:
                    out.append(f"s_add_u32 s63, s60, {st*64*ldw}\ns_and_b32 m0, s54, 1\ns_lshl_b32 m0, m0, 10\ns_add_u32 m0, m0, {buf + 16384 + 16*1024}\ns_nop 0\nbuffer_load_dwordx4 v{10+j}, s[28:31], s63 offen lds")
        return out
    AB = 16
    WB = 32
    k("v_lshrrev_b32 v5, 1, v4")
    if mode == 'a':
        k("s_lshr_b32 s58, s54, 1")
        k("s_mul_i32 s58, s58, 8192")
        k("v_lshl_add_u32 v6, v4, 7, s58")
        for kk in range(2):
            k(f"v_add_u32 v7, {4*kk}, v3")
            k("v_xor_b32 v7, v7, v5")
            k("v_lshl_add_u32 v7, v7, 4, v6")
            for b in range(3):
                k(f"v_add_u32 v{AB + b*2 + kk}, {b*STG}, v7")
        k("v_lshrrev_b32 v5, 2, v4")
        k("v_lshl_add_u32 v6, v3, 3, v5")
        k("v_lshlrev_b32 v6, 8, v6")
        k("v_and_b32 v7, 3, v1")
        k("v_lshl_add_u32 v6, v7, 3, v6")
        k("v_and_b32 v7, 1, v3")
        k("v_lshl_or_b32 v5, v7, 2, v5")
        k("s_and_b32 s58, s54, 1")
        if kind == 'qkv':
            k("s_lshl_b32 s58, s58, 14")
            k("s_add_u32 s58, s58, 16384")
            k("v_add_u32 v6, s58, v6")
            for t in range(8):
                k(f"v_xor_b32 v7, {t}, v5")
                k("v_lshl_add_u32 v7, v7, 5, v6")
                for b in range(3):
                    k(f"v_add_u32 v{WB + b*8 + t}, {b*STG}, v7")
        else:
            k("s_lshl_b32 s58, s58, 2")
            k("v_add_u32 v6, 16384, v6")
            for t in range(4):
                k(f"v_add_u32 v7, {t}, s58") if False else None
                k(f"s_add_u32 s59, s58, {t}")
                k("v_xor_b32 v7, s59, v5")
                k("v_lshl_add_u32 v7, v7, 5, v6")
                for b in range(3):
                    k(f"v_add_u32 v{WB + b*8 + t}, {b*STG}, v7")
                    k(f"v_add_u32 v{WB + b*8 + 4 + t}, {b*STG + 16384}, v7")
    else:
        k("s_mul_i32 s58, s54, 4096")
        k("v_lshl_add_u32 v6, v4, 7, s58")
        k("v_and_b32 v7, 1, v3")
        k("v_lshl_add_u32 v6, v7, 3, v6")
        k("v_lshrrev_b32 v7, 1, v3")
        k("v_xor_b32 v5, v7, v5")
        for q in range(4):
            k(f"v_xor_b32 v7, {2*q}, v5")
            k("v_lshl_add_u32 v7, v7, 4, v6")
            for b in range(3):
                k(f"v_add_u32 v{AB + b*4 + q}, {b*STG}, v7")
        k("v_lshrrev_b32 v5, 2, v4")
        k("v_lshl_add_u32 v5, v3, 2, v5")
        k("v_mul_u32_u24 v5, 288, v5")
        k("v_and_b32 v7, 3, v1")
        k("v_lshl_add_u32 v5, v7, 3, v5")
        for b in range(3):
            k(f"v_add_u32 v{WB + b}, {b*STG + 16384}, v5")
    FR = 64
    FSZ = (TM + TN) * 4
    def fa(s, mt): return FR + s*FSZ + mt*4
    def fw(s, t): return FR + s*FSZ + TM*4 + t*4
    def reads(st, kk, s):
        b = st % 3
        out = []
        for mt in range(TM):
            r = fa(s, mt)
            if mode == 'a':
                out.append(f"ds_read_b128 v[{r}:{r+3}], v{AB + b*2 + kk} offset:{mt*2048}")
            else:
                out.append(f"ds_read_b64 v[{r}:{r+1}], v{AB + b*4 + 2*kk} offset:{mt*2048}")
                out.append(f"ds_read_b64 v[{r+2}:{r+3}], v{AB + b*4 + 2*kk+1} offset:{mt*2048}")
        for t in range(TN):
            r = fw(s, t)
            if mode == 'a':
                out.append(f"ds_read_b64_tr_b16 v[{r}:{r+1}], v{WB + b*8 + t} offset:{kk*8192}")
                out.append(f"ds_read_b64_tr_b16 v[{r+2}:{r+3}], v{WB + b*8 + t} offset:{kk*8192 + 1024}")
            else:
                out.append(f"ds_read_b64_tr_b16 v[{r}:{r+1}], v{WB + b} offset:{kk*32*288 + t*32}")
                out.append(f"ds_read_b64_tr_b16 v[{r+2}:{r+3}], v{WB + b} offset:{kk*32*288 + 16*288 + t*32}")
        return out
    def acc(t, mt): return (t*TM + mt) * 4
    def mfmas(s):
        out = []
        for t in range(TN):
            for mt in range(TM):
                a = acc(t, mt)
                out.append(f"v_mfma_f32_16x16x32_bf16 a[{a}:{a+3}], v[{fw(s,t)}:{fw(s,t)+3}], v[{fa(s,mt)}:{fa(s,mt)+3}], a[{a}:{a+3}]")
        return out
    def interleave(mf, others):
        n = len(mf); m = len(others); j = 0
        for i, x in enumerate(mf):
            k(x)
            tgt = (i + 1) * m // n
            while j < tgt:
                k(others[j]); j += 1
    for i in range(TM*TN*4):
        k(f"v_accvgpr_write_b32 a{i}, 0")
    for st in range(min(3, NST)):
        for x in dma_stage(st): k(x)
    k(f"s_waitcnt vmcnt({2*NDMA})")
    k("s_barrier")
    for x in reads(0, 0, 0): k(x)
    for st in range(NST):
        k("s_waitcnt lgkmcnt(0)")
        interleave(mfmas(0), reads(st, 1, 1))
        k("s_waitcnt lgkmcnt(0)")
        oth = []
        if st + 1 < NST:
            k(f"s_waitcnt vmcnt({NDMA if st + 2 < NST else 0})")
            k("s_barrier")
            oth = reads(st+1, 0, 0)
            if st + 3 < NST:
                oth = dma_stage(st+3) + oth
        interleave(mfmas(1), oth)
    k("s_nop 7"); k("s_nop 7")
    if mode == 'a':
        k("s_lshr_b32 s58, s54, 1"); k("s_lshl_b32 s58, s58, 6")
    else:
        k("s_lshl_b32 s58, s54, 5")
    k("s_lshl_b32 s59, s45, 7"); k("s_add_u32 s58, s58, s59")
    k("v_add_u32 v5, s58, v4")
    E = 64
    if kind == 'qkv':
        k("s_movk_i32 s59, 24576")
        k("v_mul_lo_u32 v5, v5, s59")
        k("v_lshl_add_u32 v5, v3, 3, v5")
        k("s_and_b32 s58, s54, 1"); k("s_lshl_b32 s58, s58, 8"); k("s_add_u32 s50, s50, s58")
        for mt in range(TM):
            k(f"s_add_u32 s58, s50, {mt*16*24576}")
            for t in range(TN):
                a = acc(t, mt); e = E + ((t*TM+mt) % 8) * 8
                for r in range(4): k(f"v_accvgpr_read_b32 v{e+r}, a{a+r}")
                k(f"v_cvt_pk_bf16_f32 v{e+4}, v{e}, v{e+1}")
                k(f"v_cvt_pk_bf16_f32 v{e+5}, v{e+2}, v{e+3}")
                k(f"buffer_store_dwordx2 v[{e+4}:{e+5}], v5, s[24:27], s58 offen offset:{t*32}{sc}")
    elif kind == 'up':
        k("s_movk_i32 s59, 9216")
        k("v_mul_lo_u32 v5, v5, s59")
        k("v_lshl_add_u32 v5, v3, 3, v5")
        k("s_and_b32 s58, s54, 1"); k("s_lshl_b32 s58, s58, 7"); k("s_add_u32 s50, s50, s58")
        k("s_mov_b32 s40, 0x3d372713")
        k("s_mov_b32 s41, 0xc0135761")
        for mt in range(TM):
            k(f"s_add_u32 s58, s50, {mt*16*9216}")
            for t in range(4):
                ag = acc(t, mt); au = acc(t+4, mt); e = E + ((t*TM+mt) % 4) * 24
                for r in range(4): k(f"v_accvgpr_read_b32 v{e+r}, a{ag+r}")
                for r in range(4): k(f"v_accvgpr_read_b32 v{e+4+r}, a{au+r}")
                k(f"v_cvt_pk_bf16_f32 v{e+8}, v{e}, v{e+1}")
                k(f"v_cvt_pk_bf16_f32 v{e+9}, v{e+2}, v{e+3}")
                k(f"v_cvt_pk_bf16_f32 v{e+10}, v{e+4}, v{e+5}")
                k(f"v_cvt_pk_bf16_f32 v{e+11}, v{e+6}, v{e+7}")
                for r in range(4):
                    src = e+8+(r>>1); us = e+10+(r>>1)
                    if r & 1:
                        k(f"v_and_b32 v{e+r}, 0xffff0000, v{src}"); k(f"v_and_b32 v{e+4+r}, 0xffff0000, v{us}")
                    else:
                        k(f"v_lshlrev_b32 v{e+r}, 16, v{src}"); k(f"v_lshlrev_b32 v{e+4+r}, 16, v{us}")
                for r in range(4):
                    x = e+r; y = e+12+r
                    k(f"v_mul_f32 v{y}, v{x}, v{x}")
                    k(f"v_mul_f32 v{y}, v{y}, v{x}")
                    k(f"v_fma_f32 v{y}, v{y}, s40, v{x}")
                    k(f"v_mul_f32 v{y}, s41, v{y}")
                    k(f"v_exp_f32 v{y}, v{y}")
                for r in range(4):
                    y = e+12+r
                    k(f"v_add_f32 v{y}, 1.0, v{y}")
                for r in range(4):
                    y = e+12+r
                    k(f"v_rcp_f32 v{y}, v{y}")
                k("s_nop 0")
                for r in range(4):
                    k(f"v_mul_f32 v{e+r}, v{e+r}, v{e+12+r}")
                k(f"v_cvt_pk_bf16_f32 v{e+8}, v{e}, v{e+1}")
                k(f"v_cvt_pk_bf16_f32 v{e+9}, v{e+2}, v{e+3}")
                k(f"v_lshlrev_b32 v{e}, 16, v{e+8}"); k(f"v_and_b32 v{e+1}, 0xffff0000, v{e+8}")
                k(f"v_lshlrev_b32 v{e+2}, 16, v{e+9}"); k(f"v_and_b32 v{e+3}, 0xffff0000, v{e+9}")
                for r in range(4):
                    k(f"v_mul_f32 v{e+r}, v{e+r}, v{e+4+r}")
                k(f"v_cvt_pk_bf16_f32 v{e+16}, v{e}, v{e+1}")
                k(f"v_cvt_pk_bf16_f32 v{e+17}, v{e+2}, v{e+3}")
                k(f"buffer_store_dwordx2 v[{e+16}:{e+17}], v5, s[24:27], s58 offen offset:{t*32}{sc}")
    else:
        k("s_movk_i32 s59, 2304")
        k("v_mul_lo_u32 v5, v5, s59")
        k("v_lshl_add_u32 v5, v3, 4, v5")
        k(f"s_mul_i32 s58, s46, {S*D*4}"); k("s_add_u32 s50, s50, s58")
        for mt in range(TM):
            k(f"s_add_u32 s58, s50, {mt*16*2304}")
            for t in range(TN):
                a = acc(t, mt); e = E + ((t*TM+mt) % 8) * 4
                for r in range(4): k(f"v_accvgpr_read_b32 v{e+r}, a{a+r}")
                k(f"buffer_store_dwordx4 v[{e}:{e+3}], v5, s[24:27], s58 offen offset:{t*64}{sc}")
    if not embedded: k(f"{Lend}:")
    return k
```

```python
from asmlib import K
from layout import *

def red32(k, r, t):
    for off in (0x041F, 0x081F, 0x101F, 0x201F, 0x401F):
        k(f"ds_swizzle_b32 v{t}, v{r} offset:{off}")
        k("s_waitcnt lgkmcnt(0)")
        k(f"v_add_f32 v{r}, v{r}, v{t}")

def ln_core(k, X, MS, MH, T):
    k(f"v_mov_b32 v{T}, 0"); k(f"v_mov_b32 v{T+1}, 0")
    for j in range(9):
        k(f"v_lshlrev_b32 v{T+2}, 16, v{X+j}")
        k(f"v_and_b32 v{T+3}, 0xffff0000, v{X+j}")
        k(f"v_add_f32 v{T}, v{T}, v{T+2}")
        k(f"v_add_f32 v{T+1}, v{T+1}, v{T+3}")
    k(f"v_add_f32 v{T}, v{T}, v{T+1}")
    red32(k, T, T+2)
    k(f"s_mov_b32 s40, 0x{0x3ae38e39:08x}")
    k(f"v_mul_f32 v{T}, s40, v{T}")
    k(f"v_mov_b32 v{T+1}, 0"); k(f"v_mov_b32 v{T+4}, 0")
    for j in range(9):
        k(f"v_lshlrev_b32 v{T+2}, 16, v{X+j}")
        k(f"v_and_b32 v{T+3}, 0xffff0000, v{X+j}")
        k(f"v_sub_f32 v{T+2}, v{T+2}, v{T}")
        k(f"v_sub_f32 v{T+3}, v{T+3}, v{T}")
        k(f"v_fmac_f32 v{T+1}, v{T+2}, v{T+2}")
        k(f"v_fmac_f32 v{T+4}, v{T+3}, v{T+3}")
    k(f"v_add_f32 v{T+1}, v{T+1}, v{T+4}")
    red32(k, T+1, T+2)
    k(f"v_mul_f32 v{T+1}, s40, v{T+1}")
    k(f"v_cvt_pk_bf16_f32 v{T+2}, v{T}, v{T+1}")
    k(f"v_lshlrev_b32 v{T}, 16, v{T+2}")
    k(f"v_and_b32 v{T+1}, 0xffff0000, v{T+2}")
    k(f"v_add_f32 v{T+1}, 0x3727c5ac, v{T+1}")
    k(f"v_cvt_pk_bf16_f32 v{T+2}, v{T+1}, v{T+1}")
    k(f"v_lshlrev_b32 v{T+1}, 16, v{T+2}")
    k(f"v_sqrt_f32 v{T+1}, v{T+1}")
    k("s_nop 0")
    k(f"v_cvt_pk_bf16_f32 v{T+2}, v{T+1}, v{T+1}")
    k(f"v_lshlrev_b32 v{T+1}, 16, v{T+2}")
    k(f"v_rcp_f32 v{T+4}, v{T+1}")
    k("s_waitcnt vmcnt(0)")
    for j in range(9):
        a, b = T+2, T+3
        k(f"v_lshlrev_b32 v{a}, 16, v{X+j}")
        k(f"v_and_b32 v{b}, 0xffff0000, v{X+j}")
        k(f"v_sub_f32 v{a}, v{a}, v{T}")
        k(f"v_sub_f32 v{b}, v{b}, v{T}")
        k(f"v_cvt_pk_bf16_f32 v{T+5}, v{a}, v{b}")
        k(f"v_lshlrev_b32 v{a}, 16, v{T+5}")
        k(f"v_and_b32 v{b}, 0xffff0000, v{T+5}")
        k(f"v_mul_f32 v{T+6}, v{a}, v{T+4}")
        k(f"v_mul_f32 v{T+7}, v{b}, v{T+4}")
        k(f"v_fma_f32 v{T+8}, -v{T+6}, v{T+1}, v{a}")
        k(f"v_fma_f32 v{T+9}, -v{T+7}, v{T+1}, v{b}")
        k(f"v_fma_f32 v{T+6}, v{T+8}, v{T+4}, v{T+6}")
        k(f"v_fma_f32 v{T+7}, v{T+9}, v{T+4}, v{T+7}")
        k(f"v_cvt_pk_bf16_f32 v{T+5}, v{T+6}, v{T+7}")
        k(f"v_lshlrev_b32 v{a}, 16, v{T+5}")
        k(f"v_and_b32 v{b}, 0xffff0000, v{T+5}")
        k(f"v_mul_f32 v{a}, v{a}, v{MS+2*j}")
        k(f"v_mul_f32 v{b}, v{b}, v{MS+2*j+1}")
        k(f"v_cvt_pk_bf16_f32 v{T+5}, v{a}, v{b}")
        k(f"v_lshlrev_b32 v{a}, 16, v{T+5}")
        k(f"v_and_b32 v{b}, 0xffff0000, v{T+5}")
        k(f"v_add_f32 v{a}, v{a}, v{MH+2*j}")
        k(f"v_add_f32 v{b}, v{b}, v{MH+2*j+1}")
        k(f"v_cvt_pk_bf16_f32 v{X+j}, v{a}, v{b}")

def prolog(k):
    k("v_lshrrev_b32 v1, 5, v0")
    k("s_lshl_b32 s32, s2, 3")
    k("v_add_u32 v1, s32, v1")
    k("s_movk_i32 s33, 1152")
    k("v_mul_lo_u32 v4, v1, s33")
    k("v_and_b32 v2, 31, v0")
    k("v_lshl_add_u32 v1, v2, 2, v4")
    k("v_lshlrev_b32 v3, 3, v2")
    k("v_lshl_add_u32 v4, v4, 1, v3")

def load_mod(k, dst, off):
    k(f"s_mov_b32 s41, {off}")
    for i in range(9):
        k(f"buffer_load_dwordx2 v[{dst+2*i}:{dst+2*i+1}], v3, s[16:19], s41 offen offset:{i*256}")

def resid(k, X, G, P, nsplit):
    for p in range(nsplit):
        k(f"s_mov_b32 s42, {p*S*D*4}")
        for i in range(9):
            k(f"buffer_load_dwordx2 v[{P+p*18+2*i}:{P+p*18+2*i+1}], v4, s[28:31], s42 offen offset:{i*256}")
    k("s_waitcnt vmcnt(0)")
    st = 1
    while st < nsplit:
        for p in range(0, nsplit, 2*st):
            for e in range(18):
                k(f"v_add_f32 v{P+p*18+e}, v{P+p*18+e}, v{P+(p+st)*18+e}")
        st *= 2
    t = P + 18
    for i in range(9):
        a, b = P+2*i, P+2*i+1
        k(f"v_cvt_pk_bf16_f32 v{t}, v{a}, v{b}")
        k(f"v_lshlrev_b32 v{a}, 16, v{t}"); k(f"v_and_b32 v{b}, 0xffff0000, v{t}")
        k(f"v_mul_f32 v{a}, v{a}, v{G+2*i}"); k(f"v_mul_f32 v{b}, v{b}, v{G+2*i+1}")
        k(f"v_cvt_pk_bf16_f32 v{t}, v{a}, v{b}")
        k(f"v_lshlrev_b32 v{a}, 16, v{t}"); k(f"v_and_b32 v{b}, 0xffff0000, v{t}")
        k(f"v_lshlrev_b32 v{t}, 16, v{X+i}"); k(f"v_and_b32 v{t+1}, 0xffff0000, v{X+i}")
        k(f"v_add_f32 v{a}, v{a}, v{t}"); k(f"v_add_f32 v{b}, v{b}, v{t+1}")
        k(f"v_cvt_pk_bf16_f32 v{X+i}, v{a}, v{b}")

def ln1_body(k, sc):
    k(f"s_load_dwordx2 s[4:5], s[0:1], {KA['x']}")
    k(f"s_load_dwordx2 s[8:9], s[0:1], {KA['ws']}")
    k(f"s_load_dwordx2 s[6:7], s[0:1], {KA['mem0']}")
    k("s_waitcnt lgkmcnt(0)")
    k.srd(12, 4, 5, S*D*2)
    k.srd_off(16, 8, 9, OFF_MOD, 6*576*4)
    k.srd_off(20, 8, 9, OFF_H1, S*D*2)
    Lnc = k.label("nc")
    k("s_cmp_lg_u32 s2, 0")
    k(f"s_cbranch_scc1 {Lnc}")
    k.srd(24, 6, 7, 9216)
    k.srd_off(28, 8, 9, OFF_M0, 9216)
    k("s_mov_b32 s33, 58255")
    for i in range(3):
        k(f"v_add_u32 v1, {256*i}, v0")
        k("v_lshlrev_b32 v2, 4, v1")
        k(f"buffer_load_dwordx4 v[{8+4*i}:{11+4*i}], v2, s[24:27], 0 offen")
        k("v_mul_lo_u32 v3, v1, s33")
        k("v_lshrrev_b32 v3, 22, v3")
        k("v_mul_u32_u24 v4, 72, v3")
        k("v_sub_u32 v4, v1, v4")
        k("v_lshrrev_b32 v5, 1, v4")
        k("v_lshlrev_b32 v5, 8, v5")
        k("v_lshl_add_u32 v5, v3, 5, v5")
        k("v_and_b32 v4, 1, v4")
        k(f"v_lshl_add_u32 v{20+i}, v4, 4, v5")
    k("v_cmp_gt_u32 vcc, 64, v0")
    k("v_mov_b32 v6, 0x10000")
    k("v_cndmask_b32 v22, v6, v22, vcc")
    k("s_waitcnt vmcnt(0)")
    for i in range(3):
        k(f"buffer_store_dwordx4 v[{8+4*i}:{11+4*i}], v{20+i}, s[28:31], 0 offen{sc}")
    k("s_waitcnt vmcnt(0)")
    k(f"{Lnc}:")
    prolog(k)
    X = 8
    for i in range(9):
        k(f"buffer_load_dword v{X+i}, v1, s[12:15], 0 offen offset:{i*128}")
    load_mod(k, 20, 1*576*4); load_mod(k, 40, 0)
    k("s_waitcnt vmcnt(18)")
    ln_core(k, X, 20, 40, 60)
    for i in range(9):
        k(f"buffer_store_dword v{X+i}, v1, s[20:23], 0 offen offset:{i*128}{sc}")

def ln2_body(k, sc, nsplit):
    k(f"s_load_dwordx2 s[4:5], s[0:1], {KA['x']}")
    k(f"s_load_dwordx2 s[8:9], s[0:1], {KA['ws']}")
    k("s_waitcnt lgkmcnt(0)")
    k.srd(12, 4, 5, S*D*2)
    k.srd_off(16, 8, 9, OFF_MOD, 6*576*4)
    k.srd_off(20, 8, 9, OFF_H2, S*D*2)
    k.srd_off(24, 8, 9, OFF_X2, S*D*2)
    k.srd_off(28, 8, 9, OFF_P1, nsplit*S*D*4)
    prolog(k)
    X = 8
    for i in range(9):
        k(f"buffer_load_dword v{X+i}, v1, s[12:15], 0 offen offset:{i*128}")
    load_mod(k, 20, 4*576*4); load_mod(k, 40, 3*576*4); load_mod(k, 72, 2*576*4)
    resid(k, X, 72, 92, nsplit)
    for i in range(9):
        k(f"buffer_store_dword v{X+i}, v1, s[24:27], 0 offen offset:{i*128}{sc}")
    ln_core(k, X, 20, 40, 60)
    for i in range(9):
        k(f"buffer_store_dword v{X+i}, v1, s[20:23], 0 offen offset:{i*128}{sc}")

def fin_body(k, nsplit):
    k(f"s_load_dwordx2 s[4:5], s[0:1], {KA['out']}")
    k(f"s_load_dwordx2 s[8:9], s[0:1], {KA['ws']}")
    k("s_waitcnt lgkmcnt(0)")
    k.srd(20, 4, 5, S*D*2)
    k.srd_off(16, 8, 9, OFF_MOD, 6*576*4)
    k.srd_off(12, 8, 9, OFF_X2, S*D*2)
    k.srd_off(28, 8, 9, OFF_P2, nsplit*S*D*4)
    prolog(k)
    X = 8
    for i in range(9):
        k(f"buffer_load_dword v{X+i}, v1, s[12:15], 0 offen offset:{i*128}")
    load_mod(k, 72, 5*576*4)
    resid(k, X, 72, 92, nsplit)
    for i in range(9):
        k(f"buffer_store_dword v{X+i}, v1, s[20:23], 0 offen offset:{i*128}")
```

```python
from asmlib import K
from layout import *
import k_gemm, k_attn, k_small, k_ln
import k_rec4 as k_rec2
import os

BC = 163824
WB = os.environ.get("WB", "1") == "1"
SC = "" if WB else " sc1"
NWG = 256
QGATE = int(os.environ.get('QGATE', '32'))
NWORK = int(os.environ.get('NWORK', '188'))
ST_KV, ST_Q, ST_KVM, ST_ATT, ST_WO, ST_LN2, ST_UP, ST_DOWN = range(8)
DEP_LIMIT = 2000000

def k_mega(prof=False):
    k = K("mega_kernel")
    k.vgpr = 512; k.accum = 256; k.sgpr = 102
    Lend = k.label("end"); Lloop = k.label("loop"); Lrec = k.label("rec")
    k(f"s_cmp_ge_u32 s2, {NWG}")
    k(f"s_cbranch_scc1 {Lend}")
    k(f"s_load_dwordx4 s[4:7], s[0:1], {KA['Wq']}")
    k(f"s_load_dwordx4 s[8:11], s[0:1], {KA['Wv']}")
    k(f"s_load_dwordx2 s[12:13], s[0:1], {KA['ws']}")
    k(f"s_load_dwordx2 s[90:91], s[0:1], {KA['dbg']}")
    k("v_and_b32 v1, 63, v0")
    k("v_lshrrev_b32 v2, 6, v0")
    k("s_nop 0")
    k("v_readfirstlane_b32 s14, v2")
    k("s_waitcnt lgkmcnt(0)")
    k.srd(96, 90, 91, 256)
    k.srd_off(72, 12, 13, OFF_CNT, NCNT*64) if False else None
    def fetch(off, dst, load_only=False):
        Lw = k.label("w")
        k("s_barrier")
        k("s_cmp_lg_u32 s93, 0")
        k(f"s_cbranch_scc1 {Lw}")
        k("s_mov_b64 exec, 1")
        k("v_mov_b32 v2, 1")
        if load_only: k(f"buffer_load_dword v2, off, s[96:99], 0 offset:{off} sc1")
        else: k(f"buffer_atomic_add v2, off, s[96:99], 0 offset:{off} sc0 sc1")
        k(f"v_mov_b32 v3, {BC}")
        k("s_waitcnt vmcnt(0)")
        k("ds_write_b32 v3, v2")
        k("s_waitcnt lgkmcnt(0)")
        k("s_mov_b64 exec, -1")
        k(f"{Lw}:")
        k("s_barrier")
        k(f"v_mov_b32 v3, {BC}")
        k("ds_read_b32 v2, v3")
        k("s_waitcnt lgkmcnt(0)")
        k(f"v_readfirstlane_b32 {dst}, v2")
    k("s_mov_b32 s93, s14")
    k("s_mov_b32 s101, 0")
    k("s_getreg_b32 s40, hwreg(HW_REG_XCC_ID)")
    k("s_and_b32 s40, s40, 15")
    k(f"s_cmp_lg_u32 s40, {int(os.environ.get('XSEL', '0'))}")
    k(f"s_cbranch_scc1 {Lloop}")
    k(f"{Lrec}:")
    fetch(0, "s94")
    k("s_nop 3")
    k(f"s_cmp_ge_u32 s94, {k_rec2.NHEAD_WG}")
    k(f"s_cbranch_scc1 {Lloop}")
    k(f"s_load_dwordx4 s[4:7], s[0:1], {KA['Wq']}")
    k(f"s_load_dwordx4 s[8:11], s[0:1], {KA['Wv']}")
    k(f"s_load_dwordx2 s[12:13], s[0:1], {KA['ws']}")
    k("v_and_b32 v1, 63, v0")
    k("s_mov_b32 s14, s93")
    k("s_waitcnt lgkmcnt(0)")
    def kv_wait(seg_sreg):
        Ls = k.label("kvs"); Lp = k.label("kvp")
        k(f"s_and_b32 s34, {seg_sreg}, 3")
        k("s_cmp_lg_u32 s34, 0")
        k(f"s_cbranch_scc1 {Ls}")
        k(f"s_cmp_ge_u32 {seg_sreg}, 64")
        k(f"s_cbranch_scc1 {Ls}")
        k.srd_off(100-8, 12, 13, OFF_CNT, NCNT*64)
        k(f"{Ls}:")
    k_rec2.rec_body(k, Lend, 64, prof, role_sreg="s94", mega=True)
    bodies = {}
    def body(name, fn):
        L = k.label("b" + name); bodies[name] = L
        k(f"{L}:")
        fn()
        k(f"s_branch {k.Lsig}")
    k.Lsig = k.label("sig")
    body("qkv", lambda: k_gemm.gemm_kernel(None, 'qkv', k=k, sc=SC))
    body("up", lambda: k_gemm.gemm_kernel(None, 'up', k=k, sc=SC))
    k(f"{k.Lsig}:")
    k("s_waitcnt vmcnt(0)")
    k("s_barrier")
    Lns = k.label("ns")
    k("s_cmp_lg_u32 s93, 0")
    k(f"s_cbranch_scc1 {Lns}")
    if prof:
        k("s_memrealtime s[70:71]")
        k(f"s_load_dwordx2 s[12:13], s[0:1], {KA['ws']}")
        k("s_waitcnt lgkmcnt(0)")
        k.srd_off(16, 12, 13, OFF_DBG + 2*MB, 1*MB)
        k("s_lshl_b32 s40, s92, 4")
        k("s_mov_b64 exec, 1")
        k("v_mov_b32 v4, s66"); k("v_mov_b32 v5, s68"); k("v_mov_b32 v6, s70"); k("v_mov_b32 v7, s2")
        k("buffer_store_dwordx4 v[4:7], off, s[16:19], s40")
        k("s_mov_b64 exec, -1")
    k("s_cmp_eq_u32 s95, -1")
    k(f"s_cbranch_scc1 {Lns}")
    k(f"s_load_dwordx2 s[12:13], s[0:1], {KA['ws']}")
    k("s_waitcnt lgkmcnt(0)")
    k.srd_off(16, 12, 13, OFF_CNT, NCNT*64)
    if WB:
        k("buffer_wbl2 sc1")
        k("s_waitcnt vmcnt(0)")
    k("s_mov_b64 exec, 1")
    k("v_mov_b32 v2, 1")
    k("buffer_atomic_add v2, off, s[16:19], s95 sc1")
    k("s_mov_b64 exec, -1")
    k(f"{Lns}:")
    k("s_add_u32 s101, s101, 1")
    k(f"{Lloop}:")
    Lnc = k.label("nc")
    k("s_cmp_eq_u32 s101, 0")
    k(f"s_cbranch_scc1 {Lnc}")
    fetch(0, "s40", load_only=True)
    k("s_nop 3")
    k(f"s_cmp_lt_u32 s40, {k_rec2.NHEAD_WG}")
    k(f"s_cbranch_scc1 {Lrec}")
    k(f"{Lnc}:")
    fetch(128, "s92")
    k("s_nop 3")
    if prof:
        k("s_memrealtime s[66:67]"); k("s_memrealtime s[68:69]"); k("s_waitcnt lgkmcnt(0)")
    Lpost = k.label("post"); Lgo = k.label("go")
    k("s_mov_b32 s80, -1"); k("s_mov_b32 s82, -1")
    NM, NF = k_small.NMODWG, k_small.NFILLT
    T_LN1 = NM + NF; T_QKV = T_LN1 + 256; T_POST = T_QKV + 768
    for n_ in ("mod", "fill", "ln1"): bodies[n_] = k.label("b" + n_)
    L1 = k.label("t"); L2 = k.label("t"); L3 = k.label("t")
    k(f"s_cmp_ge_u32 s92, {NM}")
    k(f"s_cbranch_scc1 {L1}")
    k("s_mov_b32 s2, s92"); k(f"s_mov_b32 s95, {(8*16)*64}")
    k(f"s_branch {bodies['mod']}")
    k(f"{L1}:")
    k(f"s_cmp_ge_u32 s92, {T_LN1}")
    k(f"s_cbranch_scc1 {L2}")
    k(f"s_sub_u32 s2, s92, {NM}"); k(f"s_mov_b32 s95, {(8*16+1)*64}")
    k(f"s_mov_b32 s80, {(8*16)*64}"); k(f"s_mov_b32 s81, {NM}")
    k("s_mov_b32 s88, 8")
    k(f"s_branch {Lgo}")
    k(f"{L2}:")
    k(f"s_cmp_ge_u32 s92, {T_QKV}")
    k(f"s_cbranch_scc1 {L3}")
    k(f"s_sub_u32 s2, s92, {T_LN1}")
    k("s_lshr_b32 s95, s2, 4"); k(f"s_add_u32 s95, s95, {9*16}"); k("s_lshl_b32 s95, s95, 6")
    k(f"s_mov_b32 s80, {(8*16)*64}"); k(f"s_mov_b32 s81, {NM}")
    k("s_mov_b32 s88, 6")
    k(f"s_branch {Lgo}")
    k(f"{L3}:")
    k(f"s_cmp_ge_u32 s92, {T_POST}")
    k(f"s_cbranch_scc1 {Lpost}")
    k(f"s_sub_u32 s83, s92, {T_QKV}")
    k(f"s_mov_b32 s43, {(1<<32)//48 + 1}")
    k("s_mul_hi_u32 s84, s83, s43")
    k("s_mul_i32 s85, s84, 48")
    k("s_sub_u32 s85, s83, s85")
    k("s_add_u32 s86, s85, 16"); k("s_sub_u32 s87, s85, 32")
    k("s_cmp_lt_u32 s85, 32")
    k("s_cselect_b32 s86, s86, s87")
    k(f"s_cselect_b32 s87, {ST_KV*16}, {ST_Q*16}")
    k("s_add_u32 s87, s87, s84"); k("s_lshl_b32 s95, s87, 6")
    k("s_mul_i32 s2, s84, 48"); k("s_add_u32 s2, s2, s86")
    k(f"s_add_u32 s80, s84, {9*16}"); k("s_lshl_b32 s80, s80, 6"); k("s_mov_b32 s81, 16")
    Lq = k.label("q")
    k(f"s_cmp_lt_u32 s83, {QGATE}")
    k(f"s_cbranch_scc1 {Lq}")
    k(f"s_mov_b32 s82, {ST_KV*16*64}"); k("s_mov_b32 s83, 32")
    k(f"{Lq}:")
    k("s_mov_b32 s88, 7")
    k(f"s_branch {Lgo}")
    k(f"{Lpost}:")
    k(f"s_sub_u32 s84, s92, {T_POST}")
    k(f"s_mov_b32 s43, {(1<<32)//(100+8*NSPL) + 1}")
    k("s_mul_hi_u32 s85, s84, s43")
    k("s_cmp_ge_u32 s85, 21")
    k(f"s_cbranch_scc1 {Lend}")
    k(f"s_mul_i32 s86, s85, {100+8*NSPL}")
    k("s_sub_u32 s86, s84, s86")
    NG = 4*NSPL
    tab = [(0, 16, "fin", 16, 5, [(ST_DOWN, NG)], None),
           (16, 16+NG, "down", NG, 4, [(ST_UP, 36)], ST_DOWN),
           (16+NG, 52+NG, "up", 36, 3, [(ST_LN2, 16)], ST_UP),
           (52+NG, 68+NG, "ln2", 16, 2, [(ST_WO, NG)], ST_LN2),
           (68+NG, 68+2*NG, "wo", NG, 1, [(ST_ATT, 32)], ST_WO),
           (68+2*NG, 100+2*NG, "att", 32, 0, [(ST_Q, 16), (ST_KVM, 128)], ST_ATT)]
    for ti, (lo, hi, nm, mult, lag, deps, sig) in enumerate(tab):
        Ln = k.label("n")
        k(f"s_cmp_ge_u32 s86, {hi}")
        k(f"s_cbranch_scc1 {Ln}")
        k(f"s_sub_u32 s85, s85, {lag}")
        k("s_cmp_ge_u32 s85, 16")
        k(f"s_cbranch_scc1 {Lloop}")
        k(f"s_mul_i32 s2, s85, {mult}")
        k(f"s_add_u32 s2, s2, s86")
        k(f"s_sub_u32 s2, s2, {lo}")
        for di, (st, tg) in enumerate(deps):
            k(f"s_add_u32 s{80+2*di}, s85, {st*16}"); k(f"s_lshl_b32 s{80+2*di}, s{80+2*di}, 6")
            k(f"s_mov_b32 s{81+2*di}, {tg}")
        if sig is None: k("s_mov_b32 s95, -1")
        else:
            k(f"s_add_u32 s95, s85, {sig*16}"); k("s_lshl_b32 s95, s95, 6")
        k(f"s_mov_b32 s88, {ti}")
        k(f"s_branch {Lgo}")
        k(f"{Ln}:")
    k(f"{Lgo}:")
    Lw = k.label("w"); Lp = k.label("p"); Ld = k.label("d")
    k("s_cmp_lg_u32 s93, 0")
    k(f"s_cbranch_scc1 {Lw}")
    k(f"s_load_dwordx2 s[12:13], s[0:1], {KA['ws']}")
    k("s_waitcnt lgkmcnt(0)")
    k.srd_off(16, 12, 13, OFF_CNT, NCNT*64)
    k("s_cmp_eq_u32 s82, -1")
    k("s_cselect_b32 s82, s80, s82"); k("s_cselect_b32 s83, s81, s83")
    k("s_mov_b32 s89, 0")
    k(f"{Lp}:")
    k("buffer_load_dword v2, off, s[16:19], s80 sc1")
    k("buffer_load_dword v3, off, s[16:19], s82 sc1")
    k("s_waitcnt vmcnt(0)")
    k("v_readfirstlane_b32 s40, v2")
    k("v_readfirstlane_b32 s41, v3")
    k("s_nop 3")
    k("s_cmp_ge_u32 s40, s81")
    k("s_cselect_b32 s42, 1, 0")
    k("s_cmp_ge_u32 s41, s83")
    k("s_cselect_b32 s42, s42, 0")
    k("s_cmp_eq_u32 s42, 1")
    k(f"s_cbranch_scc1 {Lw}")
    k("s_sleep 8")
    k("s_add_u32 s89, s89, 1")
    k(f"s_cmp_lt_u32 s89, {DEP_LIMIT}")
    k(f"s_cbranch_scc1 {Lp}")
    k(f"{Lw}:")
    k("s_barrier")
    if prof:
        k("s_memrealtime s[68:69]"); k("s_waitcnt lgkmcnt(0)")
    names = [t[2] for t in tab] + ["ln1", "qkv", "fill"]
    for n_ in names:
        if n_ not in bodies: bodies[n_] = k.label("b" + n_)
    for idx, n_ in enumerate(names):
        k(f"s_cmp_eq_u32 s88, {idx}")
        k(f"s_cbranch_scc1 {bodies[n_]}")
    def body2(name, fn):
        k(f"{bodies[name]}:")
        fn()
        k(f"s_branch {k.Lsig}")
    body2("att", lambda: k_attn.k_attn(k=k, sc=SC))
    body2("wo", lambda: k_gemm.gemm_kernel(None, 'wo', k=k, sc=SC))
    body2("ln2", lambda: k_ln.ln2_body(k, SC, NSPL))
    body2("down", lambda: k_gemm.gemm_kernel(None, 'down', k=k, sc=SC))
    body2("fin", lambda: k_ln.fin_body(k, NSPL))
    body2("mod", lambda: k_small.k_mod(k=k, sc=SC))
    body2("fill", lambda: k_small.fill_body(k))
    body2("ln1", lambda: k_ln.ln1_body(k, SC))
    k(f"{Lend}:")
    return k
```

```python
from asmlib import K
from layout import *
import os

WOF = 0
KT = 131072
VT = 139264
WSTG = 131072
MEMB = 147456
MPITCH = 1152
QX = 156800
QPITCH = 784
LDS_BYTES = 163840
NHEAD_WG = 32
NRED_WG = 0
POLL_LIMIT = 300000
RSLEEP = int(os.environ.get('RSLEEP', '70'))
HSLEEP = int(os.environ.get('HSLEEP', '15'))
PGAP = int(os.environ.get('PGAP', '3'))

def wreg(f):
    if f < 32:
        return f"a[{8*f}:{8*f+7}]", lambda j: f"a{8*f+j}"
    b = 80 + 8*(f-32)
    return f"v[{b}:{b+7}]", lambda j: f"v{b+j}"

def rec_body(k, Lend, nsteps=64, prof=False, role_sreg="s2", mega=False):
    def stamp(i):
        if prof: k(f"s_memrealtime s[{64+2*i}:{65+2*i}]")
    def flush(n, tmp):
        if prof:
            k("s_waitcnt lgkmcnt(0)")
            k.srd_off(84, 12, 13, OFF_DBG, 4<<20)
            k(f"s_lshl_b32 s88, {role_sreg}, 2"); k("s_add_u32 s88, s88, s14"); k("s_lshl_b32 s88, s88, 6"); k("s_add_u32 s88, s88, s46"); k("s_lshl_b32 s88, s88, 6")
            k("s_mov_b64 exec, 1")
            for i in range(n):
                k(f"v_mov_b32 v{tmp}, s{64+2*i}")
                k(f"buffer_store_dword v{tmp}, off, s[84:87], s88 offset:{4*i}")
            k("s_mov_b64 exec, -1")
    SC = " sc1" if mega else ""
    def kv_wait(seg):
        if not mega: return
        Ls = k.label("kvs"); Lp = k.label("kvp")
        k(f"s_and_b32 s34, {seg}, 3")
        k("s_cmp_lg_u32 s34, 0")
        k(f"s_cbranch_scc1 {Ls}")
        k(f"s_cmp_ge_u32 {seg}, 64")
        k(f"s_cbranch_scc1 {Ls}")
        k(f"s_lshl_b32 s34, {seg}, 4")
        k("s_mov_b32 s35, 0")
        k(f"{Lp}:")
        k("buffer_load_dword v16, off, s[60:63], s34 sc1")
        k("s_waitcnt vmcnt(0)")
        k("v_readfirstlane_b32 s58, v16")
        k("s_nop 3")
        k("s_cmp_ge_u32 s58, 32")
        k(f"s_cbranch_scc1 {Ls}")
        k("s_sleep 8")
        k("s_add_u32 s35, s35, 1")
        k("s_cmp_lt_u32 s35, 2000000")
        k(f"s_cbranch_scc1 {Lp}")
        k(f"{Ls}:")
    def kvm_signal(step_expr_sreg):
        if not mega: return
        Ls = k.label("ks")
        k("s_cmp_lg_u32 s14, 0")
        k(f"s_cbranch_scc1 {Ls}")
        k(f"s_lshr_b32 s34, {step_expr_sreg}, 2")
        k("s_add_u32 s34, s34, 32")
        k("s_lshl_b32 s34, s34, 6")
        k("s_mov_b64 exec, 1")
        k("v_mov_b32 v16, 1")
        k("buffer_atomic_add v16, off, s[60:63], s34 sc1")
        k("s_mov_b64 exec, -1")
        k(f"{Ls}:")
    Lred = k.label("red")
    k.srd_off(16, 12, 13, OFF_PART, PART_BYTES)
    k.srd_off(20, 12, 13, OFF_MEM, OFF_M0 + 9216 - OFF_MEM)
    k.srd_off(24, 12, 13, OFF_QKV, S*12288*2)
    k.srd_off(28, 12, 13, OFF_KVM, 64*8*16384)
    k("v_lshrrev_b32 v3, 4, v1")
    k("v_and_b32 v4, 15, v1")
    k(f"s_lshl_b32 s15, {role_sreg}, 8")
    k("v_lshlrev_b32 v5, 13, v3")
    k("v_lshl_add_u32 v5, v4, 4, v5")
    k("v_lshrrev_b32 v6, 2, v4")
    k("v_and_b32 v7, 1, v3")
    k("v_lshl_add_u32 v6, v7, 2, v6")
    k("v_lshrrev_b32 v7, 1, v3")
    k("v_lshl_add_u32 v6, v7, 4, v6")
    k("v_lshlrev_b32 v6, 8, v6")
    k("v_and_b32 v7, 3, v1")
    k("v_lshl_add_u32 v6, v7, 3, v6")
    k("s_mul_i32 s32, s14, 36")
    for mat in range(3):
        lo = 4 + 2*mat
        k.srd(36, lo, lo+1, 576*4096*2)
        k("s_barrier")
        k(f"s_mul_i32 s33, s32, {4*8192}")
        k("s_add_u32 s33, s33, s15")
        k("s_lshl_b32 s34, s32, 10")
        for i in range(36):
            k(f"s_add_u32 s35, s33, {i*4*8192}")
            k(f"s_add_u32 m0, s34, {i*1024}")
            k("s_nop 0")
            k("buffer_load_dwordx4 v5, s[36:39], s35 offen lds")
        k("s_waitcnt vmcnt(0)")
        k("s_barrier")
        for w in range(4):
            if mat < 2:
                tiles = [(i, (4*w+i) % 8) for i in range(4) if (4*w+i)//8 == mat]
            else:
                tiles = [(4+i, 2*w+i) for i in range(2)]
            if not tiles: continue
            Ls = k.label("sk")
            k(f"s_cmp_lg_u32 s14, {w}")
            k(f"s_cbranch_scc1 {Ls}")
            for (i, t) in tiles:
                for k3 in range(3):
                    k(f"v_add_u32 v8, {k3*49152}, v6")
                    for kk in range(3):
                        for hp in range(4):
                            h_, p_ = hp >> 1, hp & 1
                            tr = 16 + kk*8 + hp*2
                            k(f"ds_read_b64_tr_b16 v[{tr}:{tr+1}], v8 offset:{(64*kk + 32*h_ + 8*p_)*256 + t*32}")
                    k("s_waitcnt lgkmcnt(0)")
                    for kk in range(3):
                        _, rj = wreg(i*9 + k3*3 + kk)
                        for hp in range(4):
                            h_, p_ = hp >> 1, hp & 1
                            tr = 16 + kk*8 + hp*2
                            for q in range(2):
                                d = rj(4*h_ + 2*q + p_)
                                if d[0] == 'a': k(f"v_accvgpr_write_b32 {d}, v{tr+q}")
                                else: k(f"v_mov_b32 {d}, v{tr+q}")
            k(f"{Ls}:")
    k.srd(36, 10, 11, 4096*576*2)
    k(f"s_mul_i32 s33, {role_sreg}, 147456")
    k("v_lshlrev_b32 v5, 4, v1")
    k("v_lshrrev_b32 v6, 2, v4")
    k("v_lshl_add_u32 v6, v3, 2, v6")
    k("v_mul_u32_u24 v6, 1152, v6")
    k("v_lshl_add_u32 v6, v7, 3, v6")
    k("s_mul_i32 s34, s14, 288")
    k(f"s_add_u32 s34, s34, {WSTG}")
    k("v_add_u32 v6, s34, v6")
    k("s_lshl_b32 s34, s14, 15")
    k("v_lshl_add_u32 v8, v1, 4, s34")
    for u in range(8):
        k("s_barrier")
        for i in range(5):
            Ls = None
            if i == 4:
                Ls = k.label("sk"); k("s_cmp_ge_u32 s14, 2"); k(f"s_cbranch_scc1 {Ls}")
            k(f"s_add_u32 s35, s14, {4*i}")
            k("s_lshl_b32 s35, s35, 10")
            k(f"s_add_u32 m0, s35, {WSTG}")
            k(f"s_add_u32 s35, s35, {u*18432}")
            k("s_add_u32 s35, s35, s33")
            k("buffer_load_dwordx4 v5, s[36:39], s35 offen lds")
            if Ls: k(f"{Ls}:")
        k("s_waitcnt vmcnt(0)")
        k("s_barrier")
        j = u >> 1; half = u & 1
        for ct in range(9):
            k(f"ds_read_b64_tr_b16 v[{16+2*ct}:{17+2*ct}], v6 offset:{ct*32}")
        k("s_waitcnt lgkmcnt(0)")
        for ct in range(8):
            k(f"ds_write_b64 v8, v[{16+2*ct}:{17+2*ct}] offset:{(ct*4+j)*1024 + half*8}")
        k(f"v_mov_b32 v{64+4*j+2*half}, v32")
        k(f"v_mov_b32 v{64+4*j+2*half+1}, v33")
        k("s_waitcnt lgkmcnt(0)")
    k("s_barrier")
    k("v_and_b32 v9, 7, v1")
    k("v_lshlrev_b32 v2, 4, v1")
    k(f"v_add_u32 v2, {MEMB}, v2")
    k(f"v_mul_u32_u24 v5, {2*QPITCH}, v3")
    k("v_lshl_add_u32 v5, v4, 1, v5")
    k("s_lshl_b32 s34, s14, 7")
    k(f"s_add_u32 s34, s34, {QX}")
    k("v_add_u32 v0, s34, v5")
    k("s_lshl_b32 s34, s14, 6")
    k(f"s_add_u32 s34, s34, {QX+512}")
    k("v_add_u32 v5, s34, v5")
    k(f"v_mul_u32_u24 v6, {QPITCH}, v9")
    k("v_lshl_add_u32 v6, v3, 4, v6")
    k(f"v_add_u32 v6, {QX}, v6")
    k("v_xor_b32 v7, v3, v4")
    k("v_lshlrev_b32 v7, 4, v7")
    k("v_lshl_add_u32 v7, v4, 8, v7")
    k(f"v_add_u32 v7, {KT}, v7")
    k("v_lshrrev_b32 v10, 2, v4")
    k("v_lshl_add_u32 v10, v3, 2, v10")
    k("v_and_b32 v11, 7, v10")
    k("v_lshlrev_b32 v8, 8, v10")
    k("v_lshl_add_u32 v8, v11, 5, v8")
    k("v_and_b32 v12, 3, v1")
    k("v_lshl_add_u32 v8, v12, 3, v8")
    k(f"v_add_u32 v8, {VT}, v8")
    k(f"v_mul_u32_u24 v9, {QPITCH}, v11")
    k("v_lshl_add_u32 v9, v12, 3, v9")
    k(f"v_add_u32 v9, {QX + 512}, v9")
    k("s_lshl_b32 s34, s14, 15")
    k("v_lshl_add_u32 v10, v1, 4, s34")
    k("v_lshlrev_b32 v11, 6, v4")
    k("v_lshl_add_u32 v11, v3, 4, v11")
    k("s_mul_i32 s34, s14, 4608")
    k("v_add_u32 v11, s34, v11")
    k("v_and_b32 v12, 1, v1")
    k("v_mul_u32_u24 v12, 0xaaaa, v12")
    k("v_add_u32 v12, 0x4444, v12")
    k("v_lshlrev_b32 v13, 4, v1")
    k("s_mul_i32 s55, s14, 3072")
    k(f"s_add_u32 s34, s55, {MEMB}")
    k("v_add_u32 v14, s34, v13")
    k("v_cmp_gt_u32 s[40:41], 8, v4")
    k("v_cmp_lt_u32 s[42:43], 31, v1")
    k("v_mov_b32 v20, v3")
    k("s_movk_i32 s35, 24576")
    k("v_mul_lo_u32 v21, v20, s35")
    k("v_xor_b32 v22, v20, v4")
    k("v_lshl_add_u32 v1, v22, 4, v21")
    k("v_lshrrev_b32 v22, 1, v4")
    k("v_and_b32 v23, 7, v20")
    k("v_xor_b32 v22, v22, v23")
    k("v_lshlrev_b32 v22, 1, v22")
    k("v_and_b32 v23, 1, v4")
    k("v_or_b32 v22, v22, v23")
    k("v_lshl_add_u32 v3, v22, 4, v21")
    k("s_mov_b32 s44, 0x3db504f3")
    k("s_mov_b32 s45, 0x3fb8aa3b")
    k("s_mov_b32 s46, 0")
    k("s_lshl_b32 s54, s14, 10")
    k(f"s_movk_i32 s56, {QPITCH}")
    def kvm_copy_read():
        k("v_lshrrev_b32 v4, 8, v13")
        k("s_and_b32 s34, s14, 1"); k("s_lshl_b32 s34, s34, 2")
        k("v_add_u32 v4, s34, v4")
        k("v_and_b32 v15, 0xf0, v13")
        k(f"v_mad_u32_u24 v44, v4, s56, v15")
        k("s_lshr_b32 s34, s14, 1"); k("s_lshl_b32 s35, s34, 8")
        k(f"s_add_u32 s35, s35, {QX+256}")
        k("v_add_u32 v44, s35, v44")
        k("v_lshl_add_u32 v4, v4, 14, v15")
        k("s_lshl_b32 s34, s34, 13")
        k("s_mul_i32 s58, s46, 131072")
        k("s_add_u32 s58, s58, s34")
        k("s_add_u32 s58, s58, s15")
        k("ds_read_b128 v[44:47], v44")
    def kvm_copy_store():
        k(f"buffer_store_dwordx4 v[44:47], v4, s[28:31], s58 offen{SC}")
    def kv_dma(step_sreg):
        Ls = k.label("kd")
        k("s_cmp_lg_u32 s14, 3")
        k(f"s_cbranch_scc1 {Ls}")
        k(f"s_mul_i32 s47, {step_sreg}, {32*24576}")
        k("s_add_u32 s47, s47, s15")
        k("s_add_u32 s47, s47, 8192")
        for wp in range(4):
            k(f"v_xor_b32 v60, {wp << 6}, v1")
            k(f"v_xor_b32 v61, {(wp & 1) << 7}, v3")
            for half in range(2):
                k(f"s_add_u32 s35, s47, {(wp*4 + half*16)*24576}")
                k(f"s_mov_b32 m0, {KT + wp*1024 + half*4096}")
                k("s_nop 0")
                k("buffer_load_dwordx4 v60, s[24:27], s35 offen lds")
                k("s_add_u32 s35, s35, 8192")
                k(f"s_mov_b32 m0, {VT + wp*1024 + half*4096}")
                k("s_nop 0")
                k("buffer_load_dwordx4 v61, s[24:27], s35 offen lds")
        k(f"{Ls}:")
    k.srd_off(60, 12, 13, OFF_CNT, NCNT*64)
    k("s_getreg_b32 s34, hwreg(HW_REG_XCC_ID)")
    k("s_and_b32 s34, s34, 15")
    k("s_add_u32 s34, s34, 1")
    k(f"s_lshl_b32 s35, {role_sreg}, 2")
    k(f"s_add_u32 s35, s35, {XT_OFF}")
    k("v_mov_b32 v16, s34")
    k("s_mov_b64 exec, 1")
    k("buffer_store_dword v16, off, s[60:63], s35 sc1")
    k("s_mov_b64 exec, -1")
    k("v_lshrrev_b32 v17, 4, v13")
    k("v_and_b32 v17, 31, v17")
    k("v_lshlrev_b32 v17, 2, v17")
    k(f"v_add_u32 v17, {XT_OFF}, v17")
    Lh = k.label("hs"); Lhd = k.label("hd")
    k("s_mov_b32 s35, 0")
    k(f"{Lh}:")
    k("buffer_load_dword v18, v17, s[60:63], 0 offen sc1")
    k("s_waitcnt vmcnt(0)")
    k("v_cmp_eq_u32 vcc, 0, v18")
    k(f"s_cbranch_vccz {Lhd}")
    k("s_sleep 4")
    k("s_add_u32 s35, s35, 1")
    k("s_cmp_lt_u32 s35, 4000000")
    k(f"s_cbranch_scc1 {Lh}")
    k(f"{Lhd}:")
    k("v_cmp_ne_u32 vcc, s34, v18")
    k("s_cmp_eq_u64 vcc, 0")
    k("s_cselect_b32 s59, 1, 0")
    if os.environ.get("FORCE_SLOW") == "1": k("s_mov_b32 s59, 0")
    for (off, tgt) in (((8*16+1)*64, FILL_BYTES // (512*1024)), ((9*16)*64, 16)):
        Lp = k.label("fw"); Ls = k.label("fd")
        k("s_mov_b32 s35, 0")
        k(f"s_mov_b32 s34, {off}")
        k(f"{Lp}:")
        k("buffer_load_dword v16, off, s[60:63], s34 sc1")
        k("s_waitcnt vmcnt(0)")
        k("v_readfirstlane_b32 s58, v16")
        k("s_nop 3")
        k(f"s_cmp_ge_u32 s58, {tgt}")
        k(f"s_cbranch_scc1 {Ls}")
        k("s_sleep 8")
        k("s_add_u32 s35, s35, 1")
        k("s_cmp_lt_u32 s35, 2000000")
        k(f"s_cbranch_scc1 {Lp}")
        k(f"{Ls}:")
    kv_wait("s46")
    kv_dma("s46")
    Lstep = k.label("step"); Lpoll = k.label("poll"); Lpd = k.label("pd"); Lfin = k.label("fin")
    k(f"{Lstep}:")
    if mega:
        k("s_add_u32 s53, s46, 1")
        kv_wait("s53")
    k("s_cmp_eq_u32 s14, 3")
    k(f"s_cbranch_scc1 {Lpd}")
    k("s_mul_i32 s47, s46, 9216")
    k("s_cmp_eq_u32 s46, 0")
    k(f"s_cselect_b32 s47, {OFF_M0 - OFF_MEM}, s47")
    k("s_add_u32 s47, s47, s55")
    k("s_mov_b32 s49, 0")
    k(f"s_sleep {HSLEEP}")
    def pissue():
        for i in range(3):
            k(f"s_add_u32 m0, s55, {MEMB + i*1024}")
            k(f"s_add_u32 s48, s47, {i*1024}")
            k("buffer_load_dwordx4 v13, s[20:23], s48 offen sc1 lds")
    k("s_waitcnt vmcnt(0)")
    pissue()
    k(f"s_sleep {PGAP}")
    k(f"{Lpoll}:")
    pissue()
    k("s_waitcnt vmcnt(3)")
    for i in range(3):
        k(f"ds_read_b128 v[{16+4*i}:{19+4*i}], v14 offset:{i*1024}")
    k("s_waitcnt lgkmcnt(0)")
    k("v_max3_u32 v28, v16, v17, v18")
    k("v_max3_u32 v29, v19, v20, v21")
    k("v_max3_u32 v30, v22, v23, v24")
    k("v_max3_u32 v31, v25, v26, v27")
    k("v_max3_u32 v28, v28, v29, v30")
    k("v_max_u32 v28, v28, v31")
    k("v_cmp_eq_u32 vcc, -1, v28")
    k(f"s_cbranch_vccz {Lpd}")
    k("s_add_u32 s49, s49, 1")
    k(f"s_cmp_lt_u32 s49, {POLL_LIMIT}")
    k(f"s_cbranch_scc1 {Lpoll}")
    k(f"{Lpd}:")
    stamp(0)
    k("s_barrier")
    stamp(1)
    for p in range(3):
        k(f"ds_read_b128 v[{32+4*p}:{35+4*p}], v2 offset:{p*1024}")
    for i in range(16): k(f"v_mov_b32 v{16+i}, 0")
    for ks in range(9):
        k(f"s_waitcnt lgkmcnt({min(2, 8-ks)})")
        b = 32 + 4*(ks % 3)
        for i in range(4):
            nm, _ = wreg(i*9 + ks)
            k(f"v_smfmac_f32_16x16x64_bf16 v[{16+4*i}:{19+4*i}], v[{b}:{b+3}], {nm}, v12")
        if ks + 3 < 9:
            k(f"ds_read_b128 v[{b}:{b+3}], v2 offset:{(ks+3)*1024}")
    stamp(2)
    k("s_nop 7")
    for i in range(4):
        k(f"v_add_f32 v{44}, v{16+4*i}, v{17+4*i}")
        k(f"v_add_f32 v{45}, v{18+4*i}, v{19+4*i}")
        k(f"v_cvt_pk_bf16_f32 v{46+i}, v44, v45")
        k(f"ds_write_b16 v0, v{46+i} offset:{i*32}")
        k(f"ds_write_b16_d16_hi v0, v{46+i} offset:{i*32 + QPITCH}")
    k("s_waitcnt vmcnt(0) lgkmcnt(0)")
    k("s_barrier")
    stamp(3)
    if mega:
        Lk0 = k.label("k0")
        k("s_cmp_eq_u32 s46, 0")
        k(f"s_cbranch_scc1 {Lk0}")
        k("s_sub_u32 s53, s46, 1")
        kvm_signal("s53")
        k(f"{Lk0}:")
    SET = [[16, 20, 24, 28], [32, 36, 40, 44]]
    def sreads(ks):
        r = SET[ks & 1]
        k(f"ds_read_b128 v[{r[0]}:{r[0]+3}], v6 offset:{ks*64}")
        k(f"ds_read_b128 v[{r[1]}:{r[1]+3}], v6 offset:{256+ks*64}")
        k(f"v_xor_b32 v60, {ks*64}, v7")
        k(f"ds_read_b128 v[{r[2]}:{r[2]+3}], v60")
        k(f"ds_read_b128 v[{r[3]}:{r[3]+3}], v60 offset:4096")
    last = nsteps - 1
    Lvonly = k.label("vonly")
    k(f"s_cmp_eq_u32 s46, {last}")
    k(f"s_cbranch_scc1 {Lvonly}")
    sreads(0); sreads(1)
    for i in range(12): k(f"v_mov_b32 v{48+i}, 0")
    for ks in range(4):
        k(f"s_waitcnt lgkmcnt({4 if ks < 3 else 0})")
        r = SET[ks & 1]
        for t in range(3):
            k(f"v_mfma_f32_16x16x32_bf16 v[{48+4*t}:{51+4*t}], v[{r[1+t]}:{r[1+t]+3}], v[{r[0]}:{r[0]+3}], v[{48+4*t}:{51+4*t}]")
        if ks + 2 < 4: sreads(ks + 2)
    k("s_lshl_b32 s52, s14, 6")
    for e2 in range(2):
        k(f"s_add_u32 s53, s52, {e2*32}")
        k("v_xor_b32 v60, s53, v8")
        k(f"ds_read_b64_tr_b16 v[{16+8*e2}:{17+8*e2}], v60")
        k(f"ds_read_b64_tr_b16 v[{18+8*e2}:{19+8*e2}], v60 offset:4096")
    vstream = []
    vstream.append("ds_read_b128 v[40:43], v2 offset:0")
    vstream.append("ds_read_b128 v[44:47], v2 offset:1024")
    for i in range(8): vstream.append(f"v_mov_b32 v{32+i}, 0")
    for ks in range(9):
        b = 40 + 4*(ks % 2)
        pre = f"s_waitcnt lgkmcnt({1 if ks < 8 else 0})\n"
        for i in range(2):
            nm, _ = wreg((4+i)*9 + ks)
            vstream.append(pre + f"v_smfmac_f32_16x16x64_bf16 v[{32+4*i}:{35+4*i}], v[{b}:{b+3}], {nm}, v12")
            pre = ""
        if ks + 2 < 9:
            vstream[-1] += f"\nds_read_b128 v[{b}:{b+3}], v2 offset:{(ks+2)*1024}"
    sm = []
    TT = [60, 61, 62, 63, 4, 15]
    for i in range(0, 12, 2): sm.append(f"v_cvt_pk_bf16_f32 v{TT[i>>1]}, v{48+i}, v{49+i}")
    for i in range(0, 12, 2):
        sm.append(f"v_lshlrev_b32 v{48+i}, 16, v{TT[i>>1]}"); sm.append(f"v_and_b32 v{49+i}, 0xffff0000, v{TT[i>>1]}")
    for i in range(12): sm.append(f"v_mul_f32 v{48+i}, s44, v{48+i}")
    for i in range(0, 12, 2): sm.append(f"v_cvt_pk_bf16_f32 v{TT[i>>1]}, v{48+i}, v{49+i}")
    for i in range(0, 12, 2):
        sm.append(f"v_lshlrev_b32 v{48+i}, 16, v{TT[i>>1]}"); sm.append(f"v_and_b32 v{49+i}, 0xffff0000, v{TT[i>>1]}")
    sm.append("v_mov_b32 v4, 0xff800000")
    for i in range(4): sm.append(f"v_cndmask_b32 v{48+i}, v{48+i}, v4, s[42:43]")
    sm += ["v_max3_f32 v60, v48, v49, v50", "v_max3_f32 v61, v51, v52, v53", "v_max3_f32 v62, v54, v55, v56",
           "v_max3_f32 v63, v57, v58, v59", "v_max3_f32 v60, v60, v61, v62", "v_max_f32 v60, v60, v63"]
    def xred(op, r, t):
        return [f"v_mov_b32 v{t}, v{r}\ns_nop 1\nv_permlane32_swap_b32 v{r}, v{t}", f"{op} v{r}, v{r}, v{t}",
                f"v_mov_b32 v{t}, v{r}\ns_nop 1\nv_permlane16_swap_b32 v{r}, v{t}", f"{op} v{r}, v{r}, v{t}"]
    sm += xred("v_max_f32", 60, 61)
    sm.append("v_mul_f32 v60, s45, v60")
    for i in range(12): sm.append(f"v_fma_f32 v{48+i}, v{48+i}, s45, -v60")
    for i in range(12): sm.append(f"v_exp_f32 v{48+i}, v{48+i}")
    sm.append("s_nop 0")
    sm += ["v_add_f32 v60, v48, v49", "v_add_f32 v61, v50, v51", "v_add_f32 v62, v52, v53", "v_add_f32 v63, v54, v55",
           "v_add_f32 v4, v56, v57", "v_add_f32 v15, v58, v59", "v_add_f32 v60, v60, v61", "v_add_f32 v62, v62, v63",
           "v_add_f32 v4, v4, v15", "v_add_f32 v60, v60, v62", "v_add_f32 v60, v60, v4"]
    sm += xred("v_add_f32", 60, 61)
    sm.append("v_rcp_f32 v61, v60\ns_nop 0")
    for i in range(12): sm.append(f"v_mul_f32 v{48+i}, v{48+i}, v61")
    sm += ["v_cvt_pk_bf16_f32 v22, v48, v49", "v_cvt_pk_bf16_f32 v23, v50, v51", "v_cvt_pk_bf16_f32 v60, v52, v53",
           "v_cvt_pk_bf16_f32 v61, v54, v55", "v_cvt_pk_bf16_f32 v62, v56, v57", "v_cvt_pk_bf16_f32 v63, v58, v59"]
    for x in vstream[:10]: k(x)
    vs = vstream[10:]
    n, m = len(sm), len(vs); j = 0
    for i, x in enumerate(sm):
        k(x)
        tgt = min(m, (i + 1) * m // (n - 12))
        while j < tgt: k(vs[j]); j += 1
    while j < m: k(vs[j]); j += 1
    Lvj = k.label("vj")
    k(f"s_branch {Lvj}")
    k(f"{Lvonly}:")
    for x in vstream: k(x)
    k(f"{Lvj}:")
    k("s_nop 7")
    for i in range(2):
        k(f"v_add_f32 v40, v{32+4*i}, v{33+4*i}")
        k(f"v_add_f32 v41, v{34+4*i}, v{35+4*i}")
        k(f"v_cvt_pk_bf16_f32 v{42+i}, v40, v41")
        k(f"ds_write_b16 v5, v{42+i} offset:{i*32}")
        k(f"ds_write_b16_d16_hi v5, v{42+i} offset:{i*32 + QPITCH}")
    k(f"s_cmp_eq_u32 s46, {last}")
    k(f"s_cbranch_scc1 {Lfin}")
    for i in range(8): k(f"v_mov_b32 v{32+i}, 0")
    k("s_waitcnt lgkmcnt(0)")
    k("s_barrier")
    stamp(4)
    for e2 in range(2):
        k(f"s_add_u32 s53, s52, {e2*32}")
        k("v_add_u32 v4, s53, v9")
        k(f"ds_read_b64_tr_b16 v[{20+8*e2}:{21+8*e2}], v4")
    for e2 in range(2):
        k(f"v_mfma_f32_16x16x32_bf16 v[{32+4*e2}:{35+4*e2}], v[{16+8*e2}:{19+8*e2}], v[60:63], v[{32+4*e2}:{35+4*e2}]")
    k("v_add_u32 v44, s52, v6")
    k("s_waitcnt lgkmcnt(0)")
    k("s_nop 4")
    for e2 in range(2):
        k(f"v_mfma_f32_16x16x16_bf16 v[{32+4*e2}:{35+4*e2}], v[{20+8*e2}:{21+8*e2}], v[22:23], v[{32+4*e2}:{35+4*e2}]")
    NB = 4
    lds_seq = [(ct, j) for ct in range(8) for j in range(4)]
    def issue(idx):
        ct, j = lds_seq[idx]
        b = 48 + 4*(idx % NB)
        k(f"ds_read_b128 v[{b}:{b+3}], v10 offset:{(ct*4+j)*1024}")
    issued = 0
    for p in range(NB): issue(p); issued += 1
    k("s_nop 3")
    k("v_cvt_pk_bf16_f32 v40, v32, v33"); k("v_cvt_pk_bf16_f32 v41, v34, v35")
    k("v_cvt_pk_bf16_f32 v42, v36, v37"); k("v_cvt_pk_bf16_f32 v43, v38, v39")
    k("s_mov_b64 exec, s[40:41]")
    k("ds_write_b128 v44, v[40:43]")
    k("s_mov_b64 exec, -1")
    for i in range(12): k(f"v_mov_b32 v{32+i}, 0") if i < 8 else None
    k("s_waitcnt lgkmcnt(0)")
    k("s_barrier")
    stamp(5)
    kvm_copy_read()
    for j in range(4):
        k(f"ds_read_b128 v[{16+4*j}:{19+4*j}], v6 offset:{j*64}")
    k("s_mul_i32 s47, s46, 32")
    k(f"s_add_u32 s47, s47, {role_sreg}")
    k("s_mul_i32 s47, s47, 18432")
    for i in range(4): k(f"v_mov_b32 v{40+i}, 0")
    order = [8] + list(range(8))
    used = 0; pend = None
    def dual(fmt):
        La = k.label("da"); Lb = k.label("db")
        k("s_cmp_eq_u32 s59, 1")
        k(f"s_cbranch_scc1 {La}")
        k(fmt + " sc1")
        k(f"s_branch {Lb}")
        k(f"{La}:")
        k(fmt)
        k(f"{Lb}:")
    def store_tile(ct, a):
        k("s_mov_b64 exec, s[40:41]")
        if ct == 8:
            k("s_add_u32 s50, s47, 4096")
            dual(f"buffer_store_dwordx4 v[{a}:{a+3}], v11, s[16:19], s50 offen")
        else:
            dual(f"buffer_store_dwordx4 v[{a}:{a+3}], v11, s[16:19], s47 offen offset:{ct*512}")
        k("s_mov_b64 exec, -1")
    for n, ct in enumerate(order):
        a = 32 + 4*(n % 3)
        if n >= 3:
            for i in range(4): k(f"v_mov_b32 v{a+i}, 0")
            k("s_nop 1")
        for j in range(4):
            if ct == 8:
                if j == 0: k("s_waitcnt lgkmcnt(0)")
                k(f"v_mfma_f32_16x16x32_bf16 v[{a}:{a+3}], v[{64+4*j}:{67+4*j}], v[{16+4*j}:{19+4*j}], v[{a}:{a+3}]")
            else:
                k(f"s_waitcnt lgkmcnt({issued - used - 1})")
                b = 48 + 4*(used % NB)
                k(f"v_mfma_f32_16x16x32_bf16 v[{a}:{a+3}], v[{b}:{b+3}], v[{16+4*j}:{19+4*j}], v[{a}:{a+3}]")
                used += 1
                if issued < len(lds_seq): issue(issued); issued += 1
        if pend is not None: store_tile(*pend)
        else: kvm_copy_store()
        pend = (ct, a)
    k("s_nop 7")
    store_tile(*pend)
    stamp(6)
    k("v_lshrrev_b32 v60, 7, v13")
    k("v_lshrrev_b32 v61, 4, v13")
    k("v_and_b32 v61, 7, v61")
    k("v_mul_u32_u24 v62, 18432, v60")
    k("v_lshl_add_u32 v62, v61, 4, v62")
    k(f"s_mul_i32 s47, s46, {32*18432}")
    k("s_lshl_b32 s48, s14, 7")
    k("s_add_u32 s47, s47, s48")
    k(f"s_add_u32 s51, {role_sreg}, 32")
    k(f"s_cmp_lt_u32 {role_sreg}, 4")
    k(f"s_cselect_b32 s51, s51, {role_sreg}")
    k(f"s_lshl_b32 s48, {role_sreg}, 9")
    k("s_add_u32 s48, s48, s47")
    k("s_lshl_b32 s50, s51, 9")
    k("s_add_u32 s50, s50, s47")
    k("s_mov_b32 s49, 0")
    for r in range(16): k(f"v_mov_b32 v{32+r}, 0")
    Lrp = k.label("rp"); Lrd = k.label("rd")
    k(f"{Lrp}:")
    Lone = k.label("one")
    for T, base in ((0, "s48"), (1, "s50")):
        if T == 1:
            k(f"s_cmp_ge_u32 {role_sreg}, 4")
            k(f"s_cbranch_scc1 {Lone}")
        for i in range(4):
            k(f"s_add_u32 s52, {base}, {i*8*18432}")
            k(f"buffer_load_dwordx4 v[{16+16*T+4*i}:{19+16*T+4*i}], v62, s[16:19], s52 offen sc1")
    k(f"{Lone}:")
    k("s_waitcnt vmcnt(0)")
    for T in range(2):
        b = 16 + 16*T; d = 48 + 4*T
        for r in range(4):
            k(f"v_add_f32 v{d+r}, v{b+r}, v{b+4+r}")
            k(f"v_add_f32 v{b+8+r}, v{b+8+r}, v{b+12+r}")
        for r in range(4):
            k(f"v_add_f32 v{d+r}, v{d+r}, v{b+8+r}")
    k("v_add_f32 v56, v48, v49"); k("v_add_f32 v57, v50, v51")
    k("v_add_f32 v58, v52, v53"); k("v_add_f32 v59, v54, v55")
    k("v_add_f32 v56, v56, v57"); k("v_add_f32 v58, v58, v59")
    k("v_cmp_u_f32 vcc, v56, v58")
    k(f"s_cbranch_vccz {Lrd}")
    k("s_add_u32 s49, s49, 1")
    k(f"s_cmp_lt_u32 s49, {POLL_LIMIT}")
    k(f"s_cbranch_scc1 {Lrp}")
    k(f"{Lrd}:")
    for r in range(8): k(f"v_mov_b32 v{16+r}, v{48+r}")
    k("s_nop 0")
    for r in range(8): k(f"v_permlane32_swap_b32 v{48+r}, v{16+r}")
    for r in range(8): k(f"v_add_f32 v{48+r}, v{48+r}, v{16+r}")
    for r in range(8): k(f"v_mov_b32 v{16+r}, v{48+r}")
    k("s_nop 0")
    for r in range(8): k(f"v_permlane16_swap_b32 v{48+r}, v{16+r}")
    for r in range(8): k(f"v_add_f32 v{48+r}, v{48+r}, v{16+r}")
    k("s_nop 1")
    for r in range(8): k(f"v_add_f32_dpp v{48+r}, v{48+r}, v{48+r} row_ror:8 row_mask:0xf bank_mask:0xf")
    for T in range(2):
        k(f"v_cvt_pk_bf16_f32 v{16+2*T}, v{48+4*T}, v{49+4*T}")
        k(f"v_cvt_pk_bf16_f32 v{17+2*T}, v{50+4*T}, v{51+4*T}")
    for r in range(4): k(f"v_min_u32 v{16+r}, 0xfffffffe, v{16+r}")
    k("v_lshlrev_b32 v61, 3, v61")
    k("s_add_u32 s48, s46, 1")
    k("s_mul_i32 s48, s48, 9216")
    k("s_lshl_b32 s52, s14, 6")
    k("s_add_u32 s48, s48, s52")
    k("s_lshl_b32 s50, s51, 8"); k("s_add_u32 s50, s50, s48")
    k(f"s_lshl_b32 s52, {role_sreg}, 8"); k("s_add_u32 s48, s48, s52")
    k("s_mov_b64 exec, 0xff")
    dual("buffer_store_dwordx2 v[16:17], v61, s[20:23], s48 offen")
    Lnb = k.label("nb")
    k(f"s_cmp_ge_u32 {role_sreg}, 4")
    k(f"s_cbranch_scc1 {Lnb}")
    dual("buffer_store_dwordx2 v[18:19], v61, s[20:23], s50 offen")
    k(f"{Lnb}:")
    k("s_mov_b64 exec, -1")
    k("s_add_u32 s53, s46, 1")
    kv_dma("s53")
    stamp(7)
    flush(8, 62)
    k("s_add_u32 s46, s46, 1")
    k(f"s_branch {Lstep}")
    k(f"{Lfin}:")
    k("s_waitcnt lgkmcnt(0)")
    k("s_barrier")
    kvm_copy_read()
    k("s_waitcnt lgkmcnt(0)")
    kvm_copy_store()
    if mega:
        k("s_waitcnt vmcnt(0)")
        k("s_barrier")
        kvm_signal("s46")
    k(f"s_branch {Lend}")
```

```python
MB = 1 << 20
S, D, H, DH, M, SEG, F = 2048, 576, 32, 128, 8, 32, 4608
NSEG = S // SEG
OFF_MOD  = 0
OFF_H1   = 1 * MB
OFF_QKV  = 4 * MB
OFF_KVM  = 56 * MB
OFF_OT   = 66 * MB
OFF_X2   = 84 * MB
OFF_H2   = 88 * MB
OFF_ACT  = 92 * MB
OFF_P1   = 178 * MB
OFF_PART = 112 * MB
PART_BYTES = 64 * 32 * 4608 * 4
OFF_MEM  = OFF_PART + PART_BYTES
MEM_BYTES = 64 * 9216
FILL_BYTES = 19 * 2 * MB
WS_BYTES = 256 * MB
KA = dict(x=0, mem0=8, Wq=16, Wk=24, Wv=32, Wo=40, seglen=48, Bx=56, wg=64, wu=72, wd=80, c=88, wmod=96, out=104, dbg=112, ws=120)
OFF_P2 = 215 * MB
OFF_CNT = 252 * MB
OFF_DBG = 160 * MB
NSPL = 8
assert OFF_PART + FILL_BYTES <= OFF_DBG and PART_BYTES + MEM_BYTES <= FILL_BYTES
OFF_M0 = OFF_PART + FILL_BYTES
NCNT = 192
XT_OFF = 160*64
```
